```python
import torch

def _softmax(x, axis=-1):
    return torch.softmax(x, dim=axis)
def _gelu(x):
    return torch.nn.functional.gelu(x, approximate="tanh")
def _silu(x):
    return torch.nn.functional.silu(x)
def _sigmoid(x):
    return torch.sigmoid(x)
def _layernorm(x, axis=-1, eps=1e-5):
    m = x.mean(dim=axis, keepdim=True)
    v = x.var(dim=axis, keepdim=True, unbiased=False)
    return (x - m) / torch.sqrt(v + eps)
def _scatter_add(tgt, idx, src, axis=0):
    return tgt.clone().index_add_(axis, idx, src)
def _segment_sum(src, seg, n):
    out = torch.zeros((n,) + src.shape[1:], dtype=src.dtype)
    return out.index_add_(0, seg, src)
def _pad(x, pw):
    flat = tuple(v for pair in reversed(pw) for v in pair)
    return torch.nn.functional.pad(x, flat)

kernel_name = 'gated_mix__ssm_conv_h3__grouped_kv_mqa__prompt'

def setup_inputs():

    _w = (lambda a: (lambda t: t.to(torch.bfloat16) if t.is_floating_point() else t)(torch.as_tensor(a)))
    def _A_setup():
        B, S, D = 1, 2048, 1024
        ks = 4
        return {
            "q": _w((lambda *s: torch.randn(*s, dtype=torch.bfloat16) * 0.05)(B, S, D)),
            "k": _w((lambda *s: torch.randn(*s, dtype=torch.bfloat16) * 0.4)(B, S, D)),
            "v": _w((lambda *s: torch.randn(*s, dtype=torch.bfloat16) * 0.4)(B, S, D)),
            "shift_k": _w((lambda *s: torch.randn(*s, dtype=torch.bfloat16) * 0.4)(D, ks) * 0.5),
            "ssm_k": _w((lambda *s: torch.randn(*s, dtype=torch.bfloat16) * 0.8)(D, S) * (1.0 / S ** 0.5)),
            "ssm_D": _w((lambda *s: torch.randn(*s, dtype=torch.bfloat16) * 0.4)(D)),
        }
    _A_in = _A_setup()

    def _B_setup():
        B, S, D, H = 1, 2048, 1024, 32
        Dh = D // H
        return {
            "x": _w((lambda *s: torch.randn(*s, dtype=torch.bfloat16) * 0.05)(B, S, D)),
            "wq": _w((lambda *s: torch.randn(*s, dtype=torch.bfloat16) * 0.8)(D, H * Dh)),
            "wk": _w((lambda *s: torch.randn(*s, dtype=torch.bfloat16) * 0.8)(D, Dh)),
            "wv": _w((lambda *s: torch.randn(*s, dtype=torch.bfloat16) * 0.05)(D, Dh)),
            "wo": _w((lambda *s: torch.randn(*s, dtype=torch.bfloat16) * 0.05)(H * Dh, D)),
        }
    _B_in = _B_setup()

    return {
        "A_q": _A_in["q"],
        "A_k": _A_in["k"],
        "A_v": _A_in["v"],
        "A_shift_k": _A_in["shift_k"],
        "A_ssm_k": _A_in["ssm_k"],
        "A_ssm_D": _A_in["ssm_D"],
        "B_x": _B_in["x"],
        "B_wq": _B_in["wq"],
        "B_wk": _B_in["wk"],
        "B_wv": _B_in["wv"],
        "B_wo": _B_in["wo"],
        "gate_w": _w((lambda *s: torch.randn(*s, dtype=torch.bfloat16) * 0.05)(1024) * 16.0),
    }

def reference(A_q, A_k, A_v, A_shift_k, A_ssm_k, A_ssm_D, B_x, B_wq, B_wk, B_wv, B_wo, gate_w):
    def _A_ref(q, k, v, shift_k, ssm_k, ssm_D):
        B, S, D = q.shape
        ks = shift_k.shape[-1]
        k_pad = _pad(k, ((0, 0), (ks - 1, 0), (0, 0)))
        k_shift = torch.zeros_like(k)
        for t in range(ks):
            k_shift = k_shift + k_pad[:, t:t + S, :] * shift_k[:, ks - 1 - t][None, None, :]
        kv = k_shift * v
        L = 2 * S
        kv_pad = _pad(kv, ((0, 0), (0, S), (0, 0)))
        kf_pad = _pad(ssm_k, ((0, 0), (0, S)))
        kv_f = (lambda x, axes=(-2,-1): torch.fft.rfft2(x.float(), dim=axes))(kv_pad[:, None, :, :], axes=(1, 2))
        kf_f = (lambda x, axes=(-2,-1): torch.fft.rfft2(x.float(), dim=axes))(kf_pad[:, None, :], axes=(1, 2))
        kf_f = (lambda x, *d: x.permute(*d))(kf_f, 1, 2, 0)
        y_f = kv_f * kf_f[None, :, :, :]
        y = (lambda x, s, axes=(-2,-1): torch.fft.irfft2(x, s=s, dim=axes).to(torch.bfloat16))(y_f, (1, L), axes=(1, 2))[:, 0, :S, :]
        y = y + kv * ssm_D[None, None, :]
        return q * y

    def _B_ref(x, wq, wk, wv, wo):
        B, S, D = x.shape
        H = 32
        Dh = D // H
        q = (lambda x, *d: x.permute(*d))((x @ wq).reshape(B, S, H, Dh), 0, 2, 1, 3)
        k = x @ wk
        v = x @ wv
        scores = torch.einsum("bhqd,bkd->bhqk", q, k) * (Dh ** -0.5)
        p = _softmax(scores, axis=-1)
        o = torch.einsum("bhqk,bkd->bhqd", p, v)
        return (lambda x, *d: x.permute(*d))(o, 0, 2, 1, 3).reshape(B, S, H * Dh) @ wo

    x = A_q
    g = _sigmoid((x * gate_w).sum(-1, keepdims=True))
    a = _A_ref(x, A_k, A_v, A_shift_k, A_ssm_k, A_ssm_D)
    b = _B_ref(x, B_wq, B_wk, B_wv, B_wo)
    return g * a + (1 - g) * b
```

```python
from dsl import *

MB = 1 << 20
WS_QF = 0
WS_KVT = 4 * MB
WS_O = 8 * MB
WS_ZT = 12 * MB
WS_KVF = 16 * MB
WS_G = 16 * MB + 256 * 1024
WS_SIZE = 0x10000000

KA = dict(q=0, k=8, v=16, shift=24, ssmk=32, ssmD=40, bx=48, wq=56, wk=64, wv=72, wo=80, gate=88, out=96, dbg=104, ws=112)
PTR_BASE = 64
def ptr(name):
    return PTR_BASE + KA[name] // 4

QSCALE = 0.17677669529663687 * 1.4426950408889634

def f32bits(x):
    import struct
    return struct.unpack("<I", struct.pack("<f", x))[0]

def prologue(A, nwg, exit_label):
    A(f"  s_cmp_ge_u32 s2, {nwg}")
    A(f"  s_cbranch_scc1 {exit_label}")
    A(f"  s_load_dwordx16 s[64:79], s[0:1], 0")
    A(f"  s_load_dwordx8 s[80:87], s[0:1], 64")
    A(f"  s_load_dwordx4 s[88:91], s[0:1], 96")
    A(f"  s_load_dwordx2 s[92:93], s[0:1], 112")

def srd(A, dst, name, size, off=0):
    p = ptr(name)
    if off == 0:
        A(f"  s_mov_b32 s{dst}, s{p}")
        A(f"  s_mov_b32 s{dst+1}, s{p+1}")
    else:
        A(f"  s_add_u32 s{dst}, s{p}, {off}")
        A(f"  s_addc_u32 s{dst+1}, s{p+1}, 0")
    A(f"  s_mov_b32 s{dst+2}, {size}")
    A(f"  s_mov_b32 s{dst+3}, 0x20000")

def wg_map(A, s_rb, s_hg, tmp):
    A(f"  s_and_b32 s{s_rb}, s2, 7")
    A(f"  s_lshl_b32 s{s_rb}, s{s_rb}, 2")
    A(f"  s_lshr_b32 s{tmp}, s2, 3")
    A(f"  s_and_b32 s{tmp}, s{tmp}, 3")
    A(f"  s_add_u32 s{s_rb}, s{s_rb}, s{tmp}")
    A(f"  s_lshr_b32 s{s_hg}, s2, 5")

def wave_id(A, s_wave, v_lane, vtmp):
    A(f"  v_and_b32 v{v_lane}, 63, v0")
    A(f"  v_lshrrev_b32 v{vtmp}, 6, v0")
    A(f"  s_nop 1")
    A(f"  v_readfirstlane_b32 s{s_wave}, v{vtmp}")
    A(f"  s_nop 4")

def kernel_header(A, name):
    A(f".globl {name}")
    A(f".p2align 8")
    A(f".type {name},@function")
    A(f"{name}:")

def kernel_desc(A, name, nv, ns, accum):
    A(f'.section .rodata,"a"')
    A(f".p2align 6")
    A(f".amdhsa_kernel {name}")
    A(f"  .amdhsa_next_free_vgpr {nv}")
    A(f"  .amdhsa_next_free_sgpr {ns}")
    A(f"  .amdhsa_accum_offset {accum}")
    A(f"  .amdhsa_group_segment_fixed_size 0")
    A(f"  .amdhsa_kernarg_size 120")
    A(f"  .amdhsa_user_sgpr_count 2")
    A(f"  .amdhsa_user_sgpr_kernarg_segment_ptr 1")
    A(f"  .amdhsa_system_sgpr_workgroup_id_x 1")
    A(f".end_amdhsa_kernel")
    A(f".text")

PROF = False
WS_PROF = 24 * MB
class Stamps:
    def __init__(self, A, kidx):
        self.A = A; self.n = 0; self.kidx = kidx
    def __call__(self, real=False):
        if not PROF: return
        r = 40 + 2 * self.n
        assert r + 1 <= 63
        self.A(f"  s_mem{'real' if real else ''}time s[{r}:{r+1}]")
        self.n += 1
    def flush(self, s_wave, srd_ws, vt0, vt1):
        if not PROF: return
        A = self.A
        L = A.uniq("prof")
        A(f"  s_waitcnt lgkmcnt(0) vmcnt(0)")
        A(f"  s_lshl_b32 s3, s2, 3")
        A(f"  s_add_u32 s3, s3, s{s_wave}")
        A(f"  s_lshl_b32 s3, s3, 6")
        A(f"  s_add_u32 s3, s3, {WS_PROF + self.kidx * 0x40000}")
        A(f"  v_mov_b32 v{vt0}, 0")
        for i in range(self.n):
            A(f"  v_mov_b32 v{vt1}, s{40+2*i}")
            A(f"  buffer_store_dword v{vt1}, v{vt0}, s[{srd_ws}:{srd_ws+3}], s3 offen offset:{4*i}")
        A(f"  s_waitcnt vmcnt(0)")
```

```python
from common import *

CH_STRIDE = 25920
ACOPY = 4160
BOFF = 16640
BCOPY = 4640

def gen_conv(A, R, V, ST, chan_sreg=None, store_sc=''):
    lane = R['lane']; t0, t1, t2, t3 = R['t0'], R['t1'], R['t2'], R['t3']
    sw = R['s_wave']; st0, st1 = R['st0'], R['st1']; SWS = R['srd_ws']
    SF, SX = 8, 12
    s_ch, s_hw, s_d, s_lb = 16, 17, 18, 19
    V.reset(R.get('conv_free', R['qf']))
    A(f"  s_lshr_b32 s{s_ch}, s{sw}, 1")
    A(f"  s_and_b32 s{s_hw}, s{sw}, 1")
    A(f"  s_lshl_b32 s{s_d}, s2, 2")
    A(f"  s_add_u32 s{s_d}, s{s_d}, s{s_ch}")
    A(f"  s_lshl_b32 s{st0}, s{s_d}, 12")
    A(f"  s_add_u32 s{SF}, s{ptr('ssmk')}, s{st0}")
    A(f"  s_addc_u32 s{SF+1}, s{ptr('ssmk')+1}, 0")
    A(f"  s_mov_b32 s{SF+2}, 4096")
    A(f"  s_mov_b32 s{SF+3}, 0x20000")
    A(f"  s_add_u32 s{st0}, s{st0}, {WS_KVT}")
    A(f"  s_add_u32 s{SX}, s{ptr('ws')}, s{st0}")
    A(f"  s_addc_u32 s{SX+1}, s{ptr('ws')+1}, 0")
    A(f"  s_mov_b32 s{SX+2}, 4096")
    A(f"  s_mov_b32 s{SX+3}, 0x20000")
    A(f"  s_mul_i32 s{s_lb}, s{s_ch}, {CH_STRIDE}")
    A(f"  s_lshl_b32 s{st0}, s{s_d}, 1")
    A(f"  s_and_b32 s{st0}, s{st0}, 0xfffffffc")
    A(f"  s_load_dword s20, s[{ptr('ssmD')}:{ptr('ssmD')+1}], s{st0}")
    q0 = V()
    A(f"  s_lshl_b32 s{st0}, s{s_hw}, 6")
    A(f"  v_add_u32 v{q0}, s{st0}, v{lane}")
    NP = 3
    fa = V(8 * NP, 4)
    xb = V(4 * NP, 4); xe = V(NP)
    for p in range(NP):
        A(f"  v_add_u32 v{t0}, {(128*p - 4) & 0xffffffff}, v{q0}")
        A(f"  v_lshlrev_b32 v{t0}, 4, v{t0}")
        A(f"  v_add_u32 v{t1}, 16, v{t0}")
        A(f"  buffer_load_dwordx4 {v(fa+8*p,4)}, v{t0}, s[{SF}:{SF+3}], 0 offen")
        A(f"  buffer_load_dwordx4 {v(fa+8*p+4,4)}, v{t1}, s[{SF}:{SF+3}], 0 offen")
        A(f"  v_add_u32 v{t0}, {128*p}, v{q0}")
        A(f"  v_lshlrev_b32 v{t0}, 4, v{t0}")
        A(f"  buffer_load_dwordx4 {v(xb+4*p,4)}, v{t0}, s[{SX}:{SX+3}], 0 offen")
        A(f"  buffer_load_dword v{xe+p}, v{t0}, s[{SX}:{SX+3}], 0 offen offset:16")
    A(f"  s_barrier")
    tmp = V(4, 4)
    for p in range(NP):
        A(f"  s_waitcnt vmcnt({4*(NP-1-p)})")
        A(f"  v_add_u32 v{t0}, {128*p}, v{q0}")
        A(f"  v_lshlrev_b32 v{t1}, 4, v{t0}")
        A(f"  v_add_u32 v{t1}, s{s_lb}, v{t1}")
        if p == NP - 1:
            A(f"  v_cmp_gt_u32 vcc, 260, v{t0}")
            A(f"  s_and_saveexec_b64 s[22:23], vcc")
            Lskip = A.uniq("cv")
            A(f"  s_cbranch_execz {Lskip}")
        D = fa + 8*p
        A(f"  ds_write_b128 v{t1}, {v(D,4)}")
        for j in range(4): A(f"  v_mov_b32 v{tmp+j}, v{D+1+j}")
        A(f"  ds_write_b128 v{t1}, {v(tmp,4)} offset:{ACOPY}")
        A(f"  ds_write_b128 v{t1}, {v(D+2,4)} offset:{2*ACOPY}")
        A(f"  s_nop 1")
        for j in range(4): A(f"  v_mov_b32 v{tmp+j}, v{D+3+j}")
        A(f"  ds_write_b128 v{t1}, {v(tmp,4)} offset:{3*ACOPY}")
        if p == NP - 1:
            A.label(Lskip)
            A(f"  s_mov_b64 exec, s[22:23]")
            A(f"  v_cmp_gt_u32 vcc, 284, v{t0}")
            A(f"  s_and_saveexec_b64 s[22:23], vcc")
            Lskip2 = A.uniq("cv")
            A(f"  s_cbranch_execz {Lskip2}")
        X = xb + 4*p
        A(f"  ds_write_b128 v{t1}, {v(X,4)} offset:{BOFF + BCOPY}")
        A(f"  s_nop 1")
        A(f"  v_alignbit_b32 v{tmp}, v{X+1}, v{X}, 16")
        A(f"  v_alignbit_b32 v{tmp+1}, v{X+2}, v{X+1}, 16")
        A(f"  v_alignbit_b32 v{tmp+2}, v{X+3}, v{X+2}, 16")
        A(f"  v_alignbit_b32 v{tmp+3}, v{xe+p}, v{X+3}, 16")
        A(f"  ds_write_b128 v{t1}, {v(tmp,4)} offset:{BOFF}")
        A(f"  s_nop 1")
        if p == NP - 1:
            A.label(Lskip2)
            A(f"  s_mov_b64 exec, s[22:23]")
    V.reset(q0 + 1)
    aaddr = V(); baddr = V()
    A(f"  v_and_b32 v{t0}, 3, v{lane}")
    A(f"  v_add_u32 v{t0}, 1, v{t0}")
    A(f"  v_lshrrev_b32 v{t1}, 2, v{t0}")
    A(f"  v_and_b32 v{t0}, 3, v{t0}")
    A(f"  v_mul_u32_u24 v{t0}, {ACOPY}, v{t0}")
    A(f"  v_bfe_u32 v{t2}, v{lane}, 2, 2")
    A(f"  v_add_u32 v{t1}, v{t1}, v{t2}")
    A(f"  v_lshrrev_b32 v{t2}, 4, v{lane}")
    A(f"  v_add_u32 v{t1}, v{t1}, v{t2}")
    A(f"  v_lshlrev_b32 v{t1}, 4, v{t1}")
    A(f"  v_add_u32 v{t0}, v{t0}, v{t1}")
    A(f"  s_lshl_b32 s{st0}, s{s_hw}, 8")
    A(f"  s_add_u32 s{st0}, s{st0}, s{s_lb}")
    A(f"  v_add_u32 v{aaddr}, s{st0}, v{t0}")
    A(f"  v_and_b32 v{t0}, 1, v{lane}")
    A(f"  v_mul_u32_u24 v{t0}, {BCOPY}, v{t0}")
    A(f"  v_bfe_u32 v{t1}, v{lane}, 1, 3")
    A(f"  v_lshlrev_b32 v{t1}, 6, v{t1}")
    A(f"  v_sub_u32 v{t0}, v{t0}, v{t1}")
    A(f"  v_lshlrev_b32 v{t2}, 4, v{t2}")
    A(f"  v_add_u32 v{t0}, v{t0}, v{t2}")
    A(f"  s_add_u32 s{st0}, s{st0}, {BOFF + 448}")
    A(f"  v_add_u32 v{baddr}, s{st0}, v{t0}")
    acc = V(32, 4); AF = V(32, 4); BF = V(32, 4); AD = V(4, 4)
    for i in range(32): A(f"  v_mov_b32 v{acc+i}, 0")
    A(f"  s_waitcnt lgkmcnt(0)")
    A(f"  s_and_b32 s{st0}, s{s_d}, 1")
    A(f"  s_lshl_b32 s{st0}, s{st0}, 4")
    A(f"  s_lshr_b32 s20, s20, s{st0}")
    A(f"  s_and_b32 s20, s20, 0xffff")
    A(f"  v_and_b32 v{t0}, 3, v{lane}")
    A(f"  v_lshlrev_b32 v{t0}, 1, v{t0}")
    A(f"  v_bfe_u32 v{t1}, v{lane}, 2, 2")
    A(f"  v_lshlrev_b32 v{t1}, 3, v{t1}")
    A(f"  v_add_u32 v{t0}, v{t0}, v{t1}")
    A(f"  v_lshrrev_b32 v{t1}, 4, v{lane}")
    A(f"  v_lshlrev_b32 v{t1}, 3, v{t1}")
    A(f"  v_add_u32 v{t0}, v{t0}, v{t1}")
    A(f"  v_sub_u32 v{t0}, 30, v{t0}")
    A(f"  v_mov_b32 v{t1}, s20")
    for i in range(4):
        A(f"  v_cmp_eq_u32 vcc, {2*i}, v{t0}")
        A(f"  s_nop 1")
        A(f"  v_cndmask_b32 v{AD+i}, 0, v{t1}, vcc")
    A(f"  s_barrier")
    ST()
    for kp in range(4):
        for b in range(8):
            A(f"  ds_read_b128 {v(BF+4*b,4)}, v{baddr} offset:{512*(7-b) + 64*kp}")
        for a_ in range(7):
            A(f"  ds_read_b128 {v(AF+4*a_,4)}, v{aaddr} offset:{512*a_ + 64*kp}")
        for a_ in range(8):
            A(f"  s_waitcnt lgkmcnt({6 if a_ <= 1 else 7 - a_})")
            if a_ == 0:
                A(f"  ds_read_b128 {v(AF+28,4)}, v{aaddr} offset:{512*7 + 64*kp}")
            for b in range(8 - a_):
                i = a_ + b
                A(f"  v_mfma_f32_16x16x32_bf16 {v(acc+4*i,4)}, {v(AF+4*a_,4)}, {v(BF+4*b,4)}, {v(acc+4*i,4)}")
            if a_ == 0 and kp == 0:
                Lno = A.uniq("cvd")
                A(f"  s_cmp_lg_u32 s{s_hw}, 0")
                A(f"  s_cbranch_scc1 {Lno}")
                for b in range(8):
                    A(f"  v_mfma_f32_16x16x32_bf16 {v(acc+4*b,4)}, {v(AD,4)}, {v(BF+4*b,4)}, {v(acc+4*b,4)}")
                A.label(Lno)
    A.nop(10)
    ST()
    A(f"  s_barrier")
    A(f"  v_lshlrev_b32 v{t0}, 4, v{lane}")
    A(f"  s_lshl_b32 s{st0}, s{sw}, 12")
    A(f"  v_add_u32 v{t1}, s{st0}, v{t0}")
    Lh1 = A.uniq("cvh"); Lj = A.uniq("cvj")
    A(f"  s_cmp_lg_u32 s{s_hw}, 0")
    A(f"  s_cbranch_scc1 {Lh1}")
    for i in range(4): A(f"  ds_write_b128 v{t1}, {v(acc+16+4*i,4)} offset:{1024*i}")
    A(f"  s_branch {Lj}")
    A.label(Lh1)
    for i in range(4): A(f"  ds_write_b128 v{t1}, {v(acc+4*i,4)} offset:{1024*i}")
    for i in range(16): A(f"  v_mov_b32 v{acc+i}, v{acc+16+i}")
    A.label(Lj)
    A(f"  s_waitcnt lgkmcnt(0)")
    A(f"  s_barrier")
    A(f"  s_xor_b32 s{st0}, s{sw}, 1")
    A(f"  s_lshl_b32 s{st0}, s{st0}, 12")
    A(f"  v_add_u32 v{t1}, s{st0}, v{t0}")
    o = AF
    for i in range(4): A(f"  ds_read_b128 {v(o+4*i,4)}, v{t1} offset:{1024*i}")
    A(f"  s_waitcnt lgkmcnt(0)")
    for i in range(16): A(f"  v_add_f32 v{acc+i}, v{acc+i}, v{o+i}")
    A(f"  v_and_b32 v{t0}, 1, v{lane}")
    A(f"  v_cmp_eq_u32 vcc, 1, v{t0}")
    A(f"  v_lshlrev_b32 v{t0}, 3, v{t0}")
    A(f"  v_bfe_u32 v{t1}, v{lane}, 1, 3")
    A(f"  v_lshlrev_b32 v{t1}, 6, v{t1}")
    A(f"  v_add_u32 v{t0}, v{t0}, v{t1}")
    A(f"  v_lshrrev_b32 v{t1}, 4, v{lane}")
    A(f"  v_lshlrev_b32 v{t1}, 4, v{t1}")
    A(f"  v_add_u32 v{t0}, v{t0}, v{t1}")
    A(f"  s_lshl_b32 s{st0}, s{s_d}, 12")
    A(f"  s_lshl_b32 s{st1}, s{s_hw}, 11")
    A(f"  s_add_u32 s{st0}, s{st0}, s{st1}")
    A(f"  s_add_u32 s{st0}, s{st0}, {WS_ZT}")
    sa, sb, xa, xb2, p0, p1 = BF, BF+1, BF+2, BF+3, BF+4, BF+5
    for i in range(4):
        r0, r1, r2, r3 = acc+4*i, acc+4*i+1, acc+4*i+2, acc+4*i+3
        A(f"  v_cndmask_b32 v{sa}, v{r2}, v{r0}, vcc")
        A(f"  v_cndmask_b32 v{sb}, v{r3}, v{r1}, vcc")
        A(f"  s_nop 1")
        A(f"  v_mov_b32_dpp v{xa}, v{sa} quad_perm:[1,0,3,2] row_mask:0xf bank_mask:0xf")
        A(f"  v_mov_b32_dpp v{xb2}, v{sb} quad_perm:[1,0,3,2] row_mask:0xf bank_mask:0xf")
        A(f"  v_cndmask_b32 v{sa}, v{r0}, v{xa}, vcc")
        A(f"  v_cndmask_b32 v{sb}, v{xa}, v{r2}, vcc")
        A(f"  v_cvt_pk_bf16_f32 v{p0}, v{sa}, v{sb}")
        A(f"  v_cndmask_b32 v{sa}, v{r1}, v{xb2}, vcc")
        A(f"  v_cndmask_b32 v{sb}, v{xb2}, v{r3}, vcc")
        A(f"  v_cvt_pk_bf16_f32 v{p1}, v{sa}, v{sb}")
        A(f"  buffer_store_dwordx2 {v(p0,2)}, v{t0}, s[{SWS}:{SWS+3}], s{st0} offen offset:{512*i}{store_sc}")
        A(f"  s_nop 1")
```

```python
class Asm:
    def __init__(self):
        self.lines = []
        self._lbl = 0
    def __call__(self, s=""):
        for l in s.split("\n"):
            self.lines.append(l)
    def label(self, name):
        self.lines.append(f"{name}:")
    def uniq(self, p="L"):
        self._lbl += 1
        return f"{p}_{self._lbl}"
    def text(self):
        return "\n".join(self.lines) + "\n"
    def nop(self, n):
        while n > 0:
            k = min(n, 16)
            self.lines.append(f"  s_nop {k-1}")
            n -= k

def v(i, n=1):
    return f"v{i}" if n == 1 else f"v[{i}:{i+n-1}]"
def a(i, n=1):
    return f"a{i}" if n == 1 else f"a[{i}:{i+n-1}]"
def s(i, n=1):
    return f"s{i}" if n == 1 else f"s[{i}:{i+n-1}]"

class Alloc:
    def __init__(self, start, limit, name):
        self.cur = start; self.limit = limit; self.name = name; self.hi = start
    def __call__(self, n=1, align=1):
        self.cur = (self.cur + align - 1) // align * align
        r = self.cur
        self.cur += n
        assert self.cur <= self.limit, f"{self.name} alloc overflow {self.cur} > {self.limit}"
        self.hi = max(self.hi, self.cur)
        return r
    def mark(self): return self.cur
    def reset(self, m): self.cur = m
```

```python
from common import *

class GemmCfg:
    def __init__(self, with_kv, nslots=6):
        self.with_kv = with_kv
        self.X_OFF = 0
        self.W_OFF = 8192
        self.W2_OFF = 24576
        self.STAGE = 25600 if with_kv else 24576
        self.NSLOT = nslots
        self.G4_OFF = self.STAGE * nslots
        self.NST = 16
        self.BASE = 0

def gemm_setup(A, c, R, perm_cols):
    lane = R['lane']; t0, t1, t2 = R['t0'], R['t1'], R['t2']
    sw, srb, shg = R['s_wave'], R['s_rb'], R['s_hg']
    st0, st1 = R['st0'], R['st1']
    A(f"  s_lshl_b32 s{st0}, s{sw}, 3")
    A(f"  v_lshrrev_b32 v{t0}, 3, v{lane}")
    A(f"  v_add_u32 v{t0}, s{st0}, v{t0}")
    A(f"  v_lshrrev_b32 v{t1}, 1, v{t0}")
    A(f"  v_and_b32 v{t1}, 7, v{t1}")
    A(f"  v_and_b32 v{t2}, 7, v{lane}")
    A(f"  v_xor_b32 v{t1}, v{t1}, v{t2}")
    A(f"  v_lshlrev_b32 v{t1}, 4, v{t1}")
    A(f"  s_lshl_b32 s{st1}, s{srb}, 6")
    A(f"  v_add_u32 v{t0}, s{st1}, v{t0}")
    A(f"  v_lshlrev_b32 v{t0}, 11, v{t0}")
    A(f"  v_add_u32 v{R['xoff']}, v{t0}, v{t1}")
    A(f"  v_lshrrev_b32 v{t0}, 4, v{lane}")
    A(f"  v_lshlrev_b32 v{t1}, 2, v{t0}")
    A(f"  v_and_b32 v{t2}, 15, v{lane}")
    A(f"  v_xor_b32 v{t1}, v{t1}, v{t2}")
    A(f"  v_lshlrev_b32 v{t1}, 4, v{t1}")
    A(f"  v_add_u32 v{t0}, s{st0}, v{t0}")
    A(f"  v_lshlrev_b32 v{t0}, 11, v{t0}")
    A(f"  v_add_u32 v{t0}, v{t0}, v{t1}")
    A(f"  s_lshl_b32 s{st1}, s{shg}, 8")
    A(f"  v_add_u32 v{R['woff0']}, s{st1}, v{t0}")
    A(f"  v_add_u32 v{R['woff1']}, 8192, v{R['woff0']}")
    A(f"  v_and_b32 v{t0}, 3, v{lane}")
    if perm_cols:
        A(f"  v_and_b32 v{t1}, 1, v{t0}")
        A(f"  v_lshlrev_b32 v{t1}, 1, v{t1}")
        A(f"  v_lshrrev_b32 v{t0}, 1, v{t0}")
        A(f"  v_or_b32 v{t0}, v{t0}, v{t1}")
    A(f"  v_lshrrev_b32 v{t1}, 1, v{t0}")
    A(f"  v_and_b32 v{t0}, 1, v{t0}")
    A(f"  v_lshlrev_b32 v{t0}, 3, v{t0}")
    A(f"  v_bfe_u32 v{t2}, v{lane}, 4, 1")
    A(f"  v_lshlrev_b32 v{t2}, 1, v{t2}")
    A(f"  v_add_u32 v{t1}, v{t1}, v{t2}")
    A(f"  s_lshr_b32 s{st1}, s{sw}, 1")
    A(f"  s_lshl_b32 s{st1}, s{st1}, 2")
    A(f"  v_add_u32 v{t1}, s{st1}, v{t1}")
    A(f"  v_bfe_u32 v{t2}, v{lane}, 2, 2")
    A(f"  v_lshlrev_b32 v{R['t3']}, 2, v{t2}")
    A(f"  v_xor_b32 v{t1}, v{t1}, v{R['t3']}")
    A(f"  v_lshlrev_b32 v{t1}, 4, v{t1}")
    A(f"  v_add_u32 v{t0}, v{t0}, v{t1}")
    A(f"  v_lshrrev_b32 v{t1}, 5, v{lane}")
    A(f"  v_lshlrev_b32 v{t1}, 3, v{t1}")
    A(f"  v_add_u32 v{t1}, v{t1}, v{t2}")
    A(f"  v_lshlrev_b32 v{t1}, 8, v{t1}")
    A(f"  v_add_u32 v{t0}, v{t0}, v{t1}")
    A(f"  v_add_u32 v{R['abase']}, {c.W_OFF}, v{t0}")
    A(f"  s_and_b32 s{st1}, s{sw}, 1")
    A(f"  s_lshl_b32 s{st1}, s{st1}, 5")
    A(f"  v_and_b32 v{t0}, 31, v{lane}")
    A(f"  v_add_u32 v{t0}, s{st1}, v{t0}")
    A(f"  v_lshrrev_b32 v{t1}, 1, v{t0}")
    A(f"  v_and_b32 v{t1}, 7, v{t1}")
    A(f"  v_lshrrev_b32 v{t2}, 5, v{lane}")
    A(f"  v_xor_b32 v{t1}, v{t1}, v{t2}")
    A(f"  v_lshlrev_b32 v{t1}, 4, v{t1}")
    A(f"  v_lshlrev_b32 v{t0}, 7, v{t0}")
    A(f"  v_add_u32 v{t0}, v{t0}, v{t1}")
    for q in range(4):
        A(f"  v_xor_b32 v{R['bbase']+q}, {q*32}, v{t0}")
    if c.with_kv:
        A(f"  v_add_u32 v{t0}, s{st0}, v{lane}")
        A(f"  v_lshlrev_b32 v{t0}, 6, v{t0}")
        A(f"  s_and_b32 s{st1}, s{shg}, 3")
        A(f"  s_lshl_b32 s{st1}, s{st1}, 4")
        A(f"  v_add_u32 v{R['w2off']}, s{st1}, v{t0}")
        A(f"  s_and_b32 s{st1}, s{sw}, 3")
        A(f"  s_lshl_b32 s{st1}, s{st1}, 4")
        A(f"  v_and_b32 v{t0}, 15, v{lane}")
        A(f"  v_add_u32 v{t0}, s{st1}, v{t0}")
        A(f"  v_lshrrev_b32 v{t1}, 1, v{t0}")
        A(f"  v_and_b32 v{t1}, 7, v{t1}")
        A(f"  v_lshrrev_b32 v{t2}, 4, v{lane}")
        A(f"  s_lshr_b32 s{st1}, s{sw}, 2")
        A(f"  s_lshl_b32 s{st1}, s{st1}, 2")
        A(f"  v_add_u32 v{t2}, s{st1}, v{t2}")
        A(f"  v_xor_b32 v{t1}, v{t1}, v{t2}")
        A(f"  v_lshlrev_b32 v{t1}, 4, v{t1}")
        A(f"  v_lshlrev_b32 v{t0}, 7, v{t0}")
        A(f"  v_add_u32 v{R['x16base']}, v{t0}, v{t1}")
        A(f"  v_lshrrev_b32 v{t0}, 4, v{lane}")
        A(f"  v_lshlrev_b32 v{t0}, 3, v{t0}")
        A(f"  v_bfe_u32 v{t1}, v{lane}, 2, 2")
        A(f"  v_add_u32 v{t0}, v{t0}, v{t1}")
        A(f"  s_lshl_b32 s{st1}, s{st1}, 3")
        A(f"  v_add_u32 v{t0}, s{st1}, v{t0}")
        A(f"  v_and_b32 v{t1}, 3, v{lane}")
        A(f"  v_lshlrev_b32 v{t2}, 4, v{t0}")
        A(f"  v_lshlrev_b32 v{R['t3']}, 3, v{t1}")
        A(f"  v_add_u32 v{t2}, v{t2}, v{R['t3']}")
        A(f"  v_add_u32 v{t2}, {c.W2_OFF}, v{t2}")
        A(f"  v_lshlrev_b32 v{t0}, 3, v{t0}")
        A(f"  v_add_u32 v{t0}, {c.G4_OFF}, v{t0}")
        A(f"  v_cmp_gt_u32 s[{R['s_mask']}:{R['s_mask']+1}], 2, v{t1}")
        A(f"  s_nop 1")
        A(f"  v_cndmask_b32 v{R['w2base']}, v{t0}, v{t2}, s[{R['s_mask']}:{R['s_mask']+1}]")
        A(f"  v_mov_b32 v{t0}, 32")
        A(f"  v_mov_b32 v{t1}, 64")
        A(f"  v_cndmask_b32 v{R['w2inc']}, v{t0}, v{t1}, s[{R['s_mask']}:{R['s_mask']+1}]")

def gemm_issue(A, c, R, st):
    slot = st % c.NSLOT
    base = slot * c.STAGE
    sw = R['s_wave']; st0, st1 = R['st0'], R['st1']
    sx, swd = R['srd_x'], R['srd_w']
    A(f"  s_lshl_b32 s{st0}, s{sw}, 10")
    A(f"  s_add_u32 m0, s{st0}, {base + c.X_OFF}")
    A(f"  s_movk_i32 s{st1}, {st*128}")
    A(f"  buffer_load_dwordx4 v{R['xoff']}, s[{sx}:{sx+3}], s{st1} offen lds")
    A(f"  s_lshl_b32 s{st0}, s{sw}, 11")
    A(f"  s_add_u32 m0, s{st0}, {base + c.W_OFF}")
    A(f"  s_mov_b32 s{st1}, {st*131072}")
    A(f"  buffer_load_dwordx4 v{R['woff0']}, s[{swd}:{swd+3}], s{st1} offen lds")
    A(f"  s_add_u32 m0, m0, 1024")
    A(f"  s_nop 0")
    A(f"  buffer_load_dwordx4 v{R['woff1']}, s[{swd}:{swd+3}], s{st1} offen lds")
    if c.with_kv:
        s2w = R['srd_w2']
        A(f"  s_lshl_b32 s{st0}, s{sw}, 7")
        A(f"  s_add_u32 m0, s{st0}, {base + c.W2_OFF}")
        A(f"  s_movk_i32 s{st1}, {st*4096}" if st*4096 < 32768 else f"  s_mov_b32 s{st1}, {st*4096}")
        A(f"  s_mov_b64 exec, 0xff")
        A(f"  buffer_load_dwordx4 v{R['w2off']}, s[{s2w}:{s2w+3}], s{st1} offen lds")
        A(f"  s_mov_b64 exec, -1")

def gemm_main(A, c, R, extra_vm=0):
    per = 4 if c.with_kv else 3
    acc = R['acc']; af = R['af']; bf = R['bf']
    for st in range(c.NST):
        issued_after = min(c.NST - 1, st + c.NSLOT - 2) - st
        A(f"  s_waitcnt vmcnt({per*issued_after})")
        A(f"  s_barrier")
        if st + c.NSLOT - 1 < c.NST:
            gemm_issue(A, c, R, st + c.NSLOT - 1)
        base = (st % c.NSLOT) * c.STAGE
        A(f"  v_add_u32 v{R['aaddr']}, {base}, v{R['abase']}")
        for q in range(4):
            A(f"  v_add_u32 v{R['baddr']+q}, {base}, v{R['bbase']+q}")
        if c.with_kv:
            A(f"  v_add_u32 v{R['x16addr']}, {base}, v{R['x16base']}")
            A(f"  v_mov_b32 v{R['t0']}, {base}")
            A(f"  v_mov_b32 v{R['t1']}, {st*512}")
            A(f"  v_cndmask_b32 v{R['t0']}, v{R['t1']}, v{R['t0']}, s[{R['s_mask']}:{R['s_mask']+1}]")
            A(f"  v_add_u32 v{R['w2addr']}, v{R['t0']}, v{R['w2base']}")
        for q in range(4):
            A(f"  ds_read_b64_tr_b16 {v(af+4*q,2)}, v{R['aaddr']} offset:{q*4096}")
            A(f"  ds_read_b64_tr_b16 {v(af+4*q+2,2)}, v{R['aaddr']} offset:{q*4096+1024}")
            A(f"  ds_read_b128 {v(bf+4*q,4)}, v{R['baddr']+q}")
        nk = 0
        if c.with_kv:
            A(f"  ds_read_b128 {v(R['x16f'],4)}, v{R['x16addr']}")
            A(f"  ds_read_b64_tr_b16 {v(R['w2f'],2)}, v{R['w2addr']}")
            A(f"  v_add_u32 v{R['w2addr']}, v{R['w2inc']}, v{R['w2addr']}")
            A(f"  ds_read_b64_tr_b16 {v(R['w2f']+2,2)}, v{R['w2addr']}")
            nk = 3
        for q in range(4):
            A(f"  s_waitcnt lgkmcnt({(3-q)*3+nk})")
            A(f"  v_mfma_f32_32x32x16_bf16 {v(acc,16)}, {v(af+4*q,4)}, {v(bf+4*q,4)}, {v(acc,16)}")
        if c.with_kv:
            A(f"  s_waitcnt lgkmcnt(0)")
            A(f"  v_mfma_f32_16x16x32_bf16 {v(R['acc16'],4)}, {v(R['x16f'],4)}, {v(R['w2f'],4)}, {v(R['acc16'],4)}")
```

```python
from common import *
from gemm import *

def gen_k1(A, name="k1_kernel"):
    kernel_header(A, name)
    EXIT = f"{name}_exit"
    prologue(A, 256, EXIT)
    ST = Stamps(A, 0)
    ST(real=True); ST()
    c = GemmCfg(with_kv=True)
    V = Alloc(1, 256, "v")
    R = {}
    for n in ['lane', 't0', 't1', 't2', 't3', 'xoff', 'woff0', 'woff1', 'w2off', 'abase', 'aaddr',
              'x16base', 'x16addr', 'w2base', 'w2addr', 'w2inc', 'tid']:
        R[n] = V()
    R['bbase'] = V(4); R['baddr'] = V(4)
    R['acc'] = V(16, 4); R['acc16'] = V(4, 4)
    R['af'] = V(16, 4); R['bf'] = V(16, 4); R['x16f'] = V(4, 4); R['w2f'] = V(4, 4)
    R.update(s_wave=4, s_rb=5, s_hg=6, st0=7, st1=3, s_mask=94, srd_x=8, srd_w=12, srd_w2=16)
    SK, SV, SWS, SSH, SG = 20, 24, 28, 32, 36
    lane = R['lane']; t0, t1, t2, t3 = R['t0'], R['t1'], R['t2'], R['t3']
    A(f"  v_mov_b32 v{R['tid']}, v0")
    wave_id(A, R['s_wave'], lane, t0)
    wg_map(A, R['s_rb'], R['s_hg'], R['st0'])
    A("  s_waitcnt lgkmcnt(0)")
    srd(A, R['srd_x'], 'q', 4*MB)
    srd(A, R['srd_w'], 'wq', 2*MB)
    A(f"  s_cmp_lt_u32 s{R['s_hg']}, 4")
    A(f"  s_cselect_b32 s16, s{ptr('wk')}, s{ptr('wv')}")
    A(f"  s_cselect_b32 s17, s{ptr('wk')+1}, s{ptr('wv')+1}")
    A(f"  s_mov_b32 s18, 65536")
    A(f"  s_mov_b32 s19, 0x20000")
    srd(A, SK, 'k', 4*MB)
    srd(A, SV, 'v', 4*MB)
    srd(A, SWS, 'ws', WS_SIZE)
    srd(A, SSH, 'shift', 8192)
    srd(A, SG, 'gate', 2048)

    mk = V.mark()
    kr = V(20, 4)
    vr = V(8, 4)
    wr = V(16, 4)
    gw = V(1)
    po = V(1)
    tid = R['tid']
    A(f"  v_lshrrev_b32 v{t0}, 4, v{tid}")
    A(f"  v_lshlrev_b32 v{t0}, 1, v{t0}")
    A(f"  s_lshl_b32 s{R['st0']}, s{R['s_rb']}, 6")
    A(f"  v_add_u32 v{t0}, s{R['st0']}, v{t0}")
    A(f"  v_and_b32 v{t1}, 15, v{tid}")
    A(f"  v_lshlrev_b32 v{t2}, 4, v{t1}")
    A(f"  s_lshl_b32 s{R['st0']}, s{R['s_hg']}, 8")
    A(f"  v_add_u32 v{t2}, s{R['st0']}, v{t2}")
    A(f"  v_lshlrev_b32 v{t0}, 11, v{t0}")
    A(f"  v_add_u32 v{po}, v{t0}, v{t2}")
    for j in range(5):
        A(f"  v_add_u32 v{t0}, {(j-3)*2048 & 0xffffffff}, v{po}")
        A(f"  buffer_load_dwordx4 {v(kr+4*j,4)}, v{t0}, s[{SK}:{SK+3}], 0 offen")
    for j in range(2):
        A(f"  buffer_load_dwordx4 {v(vr+4*j,4)}, v{po}, s[{SV}:{SV+3}], 0 offen offset:{j*2048}")
    A(f"  v_lshlrev_b32 v{t2}, 2, v{t2}")
    for j in range(4):
        A(f"  buffer_load_dwordx4 {v(wr+4*j,4)}, v{t2}, s[{SSH}:{SSH+3}], 0 offen offset:{j*16}")
    A(f"  v_lshlrev_b32 v{t0}, 2, v{tid}")
    A(f"  buffer_load_dword v{gw}, v{t0}, s[{SG}:{SG+3}], 0 offen")
    NPREP = 5 + 2 + 4 + 1

    gemm_setup(A, c, R, perm_cols=True)
    for st in range(c.NSLOT - 1):
        gemm_issue(A, c, R, st)
    ndma = 4 * (c.NSLOT - 1)
    for i in range(16):
        A(f"  v_mov_b32 v{R['acc']+i}, 0")
    for i in range(4):
        A(f"  v_mov_b32 v{R['acc16']+i}, 0")

    A(f"  s_waitcnt vmcnt({ndma})")
    ST()
    A(f"  v_lshlrev_b32 v{t0}, 4, v{tid}")
    A(f"  v_add_u32 v{t0}, {c.G4_OFF}, v{t0}")
    A(f"  v_and_b32 v{t1}, 0xffff, v{gw}")
    A(f"  v_lshrrev_b32 v{t2}, 16, v{gw}")
    A(f"  ds_write_b32 v{t0}, v{t1}")
    A(f"  ds_write_b32 v{t0}, v{t1} offset:4")
    A(f"  ds_write_b32 v{t0}, v{t2} offset:8")
    A(f"  ds_write_b32 v{t0}, v{t2} offset:12")

    kf = V(8)
    ks0 = V(8); ks1 = V(8)
    wf = V(32)
    for d in range(8):
        for tp in range(4):
            src = wr + d*2 + (tp >> 1)
            if tp & 1:
                A(f"  v_and_b32 v{wf+d*4+tp}, 0xffff0000, v{src}")
            else:
                A(f"  v_lshlrev_b32 v{wf+d*4+tp}, 16, v{src}")
    for j in range(5):
        for d in range(8):
            src = kr + 4*j + (d >> 1)
            if d & 1:
                A(f"  v_and_b32 v{kf+d}, 0xffff0000, v{src}")
            else:
                A(f"  v_lshlrev_b32 v{kf+d}, 16, v{src}")
        for d in range(8):
            if j <= 3:
                tp = 3 - j
                if j == 0: A(f"  v_mul_f32 v{ks0+d}, v{kf+d}, v{wf+d*4+tp}")
                else:      A(f"  v_fma_f32 v{ks0+d}, v{kf+d}, v{wf+d*4+tp}, v{ks0+d}")
            if j >= 1:
                tp = 4 - j
                if j == 1: A(f"  v_mul_f32 v{ks1+d}, v{kf+d}, v{wf+d*4+tp}")
                else:      A(f"  v_fma_f32 v{ks1+d}, v{kf+d}, v{wf+d*4+tp}, v{ks1+d}")
    for (ks, row) in ((ks0, 0), (ks1, 1)):
        for d in range(0, 8, 2):
            A(f"  v_cvt_pk_bf16_f32 v{t3}, v{ks+d}, v{ks+d+1}")
            A(f"  v_lshlrev_b32 v{ks+d}, 16, v{t3}")
            A(f"  v_and_b32 v{ks+d+1}, 0xffff0000, v{t3}")
        for d in range(8):
            src = vr + 4*row + (d >> 1)
            if d & 1: A(f"  v_and_b32 v{kf+d}, 0xffff0000, v{src}")
            else:     A(f"  v_lshlrev_b32 v{kf+d}, 16, v{src}")
        for d in range(8):
            A(f"  v_mul_f32 v{ks+d}, v{ks+d}, v{kf+d}")
    SCR = 5 * c.STAGE
    A(f"  v_lshrrev_b32 v{t0}, 4, v{tid}")
    A(f"  v_sub_u32 v{t0}, 31, v{t0}")
    A(f"  v_lshrrev_b32 v{t1}, 2, v{t0}")
    A(f"  v_and_b32 v{t2}, 7, v{tid}")
    A(f"  v_xor_b32 v{t1}, v{t1}, v{t2}")
    A(f"  v_lshlrev_b32 v{t1}, 2, v{t1}")
    A(f"  v_and_b32 v{t0}, 3, v{t0}")
    A(f"  v_or_b32 v{t0}, v{t0}, v{t1}")
    A(f"  v_lshlrev_b32 v{t0}, 2, v{t0}")
    A(f"  v_and_b32 v{t1}, 15, v{tid}")
    A(f"  v_lshlrev_b32 v{t1}, 10, v{t1}")
    A(f"  v_add_u32 v{t0}, v{t0}, v{t1}")
    A(f"  v_add_u32 v{t0}, {SCR}, v{t0}")
    for d in range(8):
        A(f"  v_cvt_pk_bf16_f32 v{kf+d}, v{ks1+d}, v{ks0+d}")
    for d in range(8):
        A(f"  ds_write_b32 v{t0}, v{kf+d} offset:{d*128}")
    A(f"  s_waitcnt lgkmcnt(0)")
    A(f"  s_barrier")
    rd = kr
    A(f"  v_lshrrev_b32 v{t0}, 2, v{tid}")
    A(f"  v_bfe_u32 v{t1}, v{t0}, 3, 3")
    A(f"  v_and_b32 v{t2}, 3, v{tid}")
    A(f"  v_lshlrev_b32 v{t2}, 1, v{t2}")
    A(f"  v_xor_b32 v{t3}, v{t2}, v{t1}")
    A(f"  v_lshlrev_b32 v{t3}, 4, v{t3}")
    A(f"  v_lshlrev_b32 v{kf}, 7, v{t0}")
    A(f"  v_add_u32 v{kf}, {SCR}, v{kf}")
    A(f"  v_add_u32 v{kf+1}, v{kf}, v{t3}")
    A(f"  v_xor_b32 v{t3}, 16, v{t3}")
    A(f"  v_add_u32 v{kf+2}, v{kf}, v{t3}")
    A(f"  ds_read_b128 {v(rd,4)}, v{kf+1}")
    A(f"  ds_read_b128 {v(rd+4,4)}, v{kf+2}")
    A(f"  s_lshl_b32 s{R['st0']}, s{R['s_hg']}, 7")
    A(f"  v_add_u32 v{t0}, s{R['st0']}, v{t0}")
    A(f"  v_lshlrev_b32 v{t0}, 12, v{t0}")
    A(f"  v_lshlrev_b32 v{t2}, 4, v{t2}")
    A(f"  v_add_u32 v{t0}, v{t0}, v{t2}")
    A(f"  s_lshl_b32 s{R['st0']}, s{R['s_rb']}, 7")
    A(f"  s_sub_u32 s{R['st0']}, {WS_KVT + 1984*2}, s{R['st0']}")
    A(f"  s_waitcnt lgkmcnt(0)")
    A(f"  buffer_store_dwordx4 {v(rd,4)}, v{t0}, s[{SWS}:{SWS+3}], s{R['st0']} offen")
    A(f"  buffer_store_dwordx4 {v(rd+4,4)}, v{t0}, s[{SWS}:{SWS+3}], s{R['st0']} offen offset:16")
    ST()
    gemm_main_k1(A, c, R, extra=2)
    ST()

    A.nop(16)
    acc = R['acc']
    A(f"  s_mov_b32 s{R['st0']}, {f32bits(QSCALE)}")
    for i in range(16):
        A(f"  v_mul_f32 v{acc+i}, s{R['st0']}, v{acc+i}")
    q = R['af']
    for i in range(8):
        A(f"  v_cvt_pk_bf16_f32 v{q+i}, v{acc+2*i}, v{acc+2*i+1}")
    A(f"  s_lshl_b32 s{R['st0']}, s2, 3")
    A(f"  s_add_u32 s{R['st0']}, s{R['st0']}, s{R['s_wave']}")
    A(f"  s_lshl_b32 s{R['st0']}, s{R['st0']}, 11")
    A(f"  v_lshlrev_b32 v{t0}, 4, v{lane}")
    A(f"  buffer_store_dwordx4 {v(q,4)}, v{t0}, s[{SWS}:{SWS+3}], s{R['st0']} offen")
    A(f"  buffer_store_dwordx4 {v(q+4,4)}, v{t0}, s[{SWS}:{SWS+3}], s{R['st0']} offen offset:1024")

    A(f"  s_barrier")
    a16 = R['acc16']
    A(f"  s_and_b32 s{R['st0']}, s{R['s_wave']}, 3")
    A(f"  s_lshl_b32 s{R['st0']}, s{R['st0']}, 10")
    A(f"  s_lshr_b32 s{R['st1']}, s{R['s_wave']}, 2")
    A(f"  s_lshl_b32 s{R['st1']}, s{R['st1']}, 12")
    A(f"  s_add_u32 s{R['st0']}, s{R['st0']}, s{R['st1']}")
    A(f"  v_lshrrev_b32 v{t0}, 4, v{lane}")
    A(f"  v_lshlrev_b32 v{t0}, 8, v{t0}")
    A(f"  v_and_b32 v{t1}, 15, v{lane}")
    A(f"  v_lshlrev_b32 v{t1}, 2, v{t1}")
    A(f"  v_add_u32 v{t0}, v{t0}, v{t1}")
    A(f"  v_add_u32 v{t0}, s{R['st0']}, v{t0}")
    for r in range(4):
        A(f"  ds_write_b32 v{t0}, v{a16+r} offset:{r*64}")
    A(f"  s_waitcnt lgkmcnt(0)")
    A(f"  s_barrier")
    L_notw0 = A.uniq("k1w0"); L_isV = A.uniq("k1v"); L_done = A.uniq("k1d"); L_notw1 = A.uniq("k1w1")
    A(f"  s_cmp_lg_u32 s{R['s_wave']}, 0")
    A(f"  s_cbranch_scc1 {L_notw0}")
    x = R['af']
    y = R['bf']
    A(f"  s_cmp_ge_u32 s{R['s_hg']}, 4")
    A(f"  s_cbranch_scc1 {L_isV}")
    A(f"  v_lshlrev_b32 v{t0}, 6, v{lane}")
    A(f"  ds_read_b128 {v(x,4)}, v{t0}")
    A(f"  ds_read_b128 {v(x+4,4)}, v{t0} offset:16")
    A(f"  ds_read_b128 {v(y,4)}, v{t0} offset:4096")
    A(f"  ds_read_b128 {v(y+4,4)}, v{t0} offset:4112")
    A(f"  s_waitcnt lgkmcnt(0)")
    for i in range(8):
        A(f"  v_add_f32 v{x+i}, v{x+i}, v{y+i}")
    for i in range(4):
        A(f"  v_cvt_pk_bf16_f32 v{y+i}, v{x+2*i}, v{x+2*i+1}")
    A(f"  v_and_b32 v{t0}, 0x13, v{lane}")
    A(f"  v_bfe_u32 v{t1}, v{lane}, 2, 1")
    A(f"  v_lshlrev_b32 v{t1}, 3, v{t1}")
    A(f"  v_or_b32 v{t0}, v{t0}, v{t1}")
    A(f"  v_bfe_u32 v{t1}, v{lane}, 3, 1")
    A(f"  v_lshlrev_b32 v{t1}, 2, v{t1}")
    A(f"  v_or_b32 v{t0}, v{t0}, v{t1}")
    A(f"  v_lshlrev_b32 v{t0}, 4, v{t0}")
    A(f"  v_lshrrev_b32 v{t1}, 5, v{lane}")
    A(f"  v_lshlrev_b32 v{t1}, 12, v{t1}")
    A(f"  v_add_u32 v{t0}, v{t0}, v{t1}")
    A(f"  s_lshl_b32 s{R['st0']}, s{R['s_rb']}, 13")
    A(f"  s_lshl_b32 s{R['st1']}, s{R['s_hg']}, 9")
    A(f"  s_add_u32 s{R['st0']}, s{R['st0']}, s{R['st1']}")
    A(f"  s_add_u32 s{R['st0']}, s{R['st0']}, {WS_KVF}")
    A(f"  buffer_store_dwordx4 {v(y,4)}, v{t0}, s[{SWS}:{SWS+3}], s{R['st0']} offen")
    A(f"  s_branch {L_done}")
    A.label(L_isV)
    A(f"  v_lshrrev_b32 v{t0}, 3, v{lane}")
    A(f"  v_lshlrev_b32 v{t0}, 9, v{t0}")
    A(f"  v_and_b32 v{t1}, 7, v{lane}")
    A(f"  v_lshlrev_b32 v{t1}, 2, v{t1}")
    A(f"  v_add_u32 v{t0}, v{t0}, v{t1}")
    for i in range(8):
        A(f"  ds_read_b32 v{x+i}, v{t0} offset:{i*64}")
        A(f"  ds_read_b32 v{y+i}, v{t0} offset:{4096+i*64}")
    A(f"  s_waitcnt lgkmcnt(0)")
    for i in range(8):
        A(f"  v_add_f32 v{x+i}, v{x+i}, v{y+i}")
    for i in range(4):
        A(f"  v_cvt_pk_bf16_f32 v{y+i}, v{x+2*i}, v{x+2*i+1}")
    A(f"  s_sub_u32 s{R['st0']}, s{R['s_hg']}, 4")
    A(f"  s_lshl_b32 s{R['st0']}, s{R['st0']}, 3")
    A(f"  v_and_b32 v{t0}, 7, v{lane}")
    A(f"  v_add_u32 v{t0}, s{R['st0']}, v{t0}")
    A(f"  v_and_b32 v{t1}, 3, v{t0}")
    A(f"  v_bfe_u32 v{t2}, v{t0}, 2, 2")
    A(f"  v_lshlrev_b32 v{t2}, 3, v{t2}")
    A(f"  v_or_b32 v{t1}, v{t1}, v{t2}")
    A(f"  v_bfe_u32 v{t2}, v{t0}, 4, 1")
    A(f"  v_lshlrev_b32 v{t2}, 2, v{t2}")
    A(f"  v_or_b32 v{t1}, v{t1}, v{t2}")
    A(f"  v_lshlrev_b32 v{t1}, 4, v{t1}")
    A(f"  v_lshrrev_b32 v{t0}, 3, v{lane}")
    A(f"  v_and_b32 v{t2}, 3, v{t0}")
    A(f"  v_lshlrev_b32 v{t2}, 9, v{t2}")
    A(f"  v_add_u32 v{t1}, v{t1}, v{t2}")
    A(f"  v_lshrrev_b32 v{t0}, 2, v{t0}")
    A(f"  v_lshlrev_b32 v{t0}, 12, v{t0}")
    A(f"  v_add_u32 v{t0}, v{t0}, v{t1}")
    A(f"  s_lshl_b32 s{R['st0']}, s{R['s_rb']}, 13")
    A(f"  s_add_u32 s{R['st0']}, s{R['st0']}, {WS_KVF + 2048}")
    A(f"  buffer_store_dwordx4 {v(y,4)}, v{t0}, s[{SWS}:{SWS+3}], s{R['st0']} offen")
    A(f"  s_branch {L_done}")
    A.label(L_notw0)
    A(f"  s_cmp_lg_u32 s{R['s_wave']}, 1")
    A(f"  s_cbranch_scc1 {L_done}")
    A(f"  s_cmp_lg_u32 s{R['s_hg']}, 0")
    A(f"  s_cbranch_scc1 {L_done}")
    A(f"  v_lshlrev_b32 v{t0}, 6, v{lane}")
    A(f"  ds_read_b32 v{x}, v{t0} offset:32")
    A(f"  ds_read_b32 v{y}, v{t0} offset:{4096+32}")
    A(f"  s_waitcnt lgkmcnt(0)")
    A(f"  v_add_f32 v{x}, v{x}, v{y}")
    A(f"  v_cvt_pk_bf16_f32 v{x}, v{x}, v{x}")
    A(f"  v_lshlrev_b32 v{x}, 16, v{x}")
    A(f"  v_mul_f32 v{x}, {f32bits(-1.4426950408889634)}, v{x}")
    A(f"  v_exp_f32 v{x}, v{x}")
    A(f"  s_nop 0")
    A(f"  v_add_f32 v{x}, 1.0, v{x}")
    A(f"  v_rcp_f32 v{x}, v{x}")
    A(f"  s_nop 0")
    A(f"  v_cvt_pk_bf16_f32 v{x}, v{x}, v{x}")
    A(f"  v_lshlrev_b32 v{x}, 16, v{x}")
    A(f"  v_lshlrev_b32 v{t0}, 2, v{lane}")
    A(f"  s_lshl_b32 s{R['st0']}, s{R['s_rb']}, 8")
    A(f"  s_add_u32 s{R['st0']}, s{R['st0']}, {WS_G}")
    A(f"  buffer_store_dword v{x}, v{t0}, s[{SWS}:{SWS+3}], s{R['st0']} offen")
    A.label(L_done)
    ST(); ST(real=True)
    ST.flush(R['s_wave'], SWS, t0, t1)
    A.label(EXIT)
    A("  s_endpgm")
    kernel_desc(A, name, 192, 102, 192)
    assert V.hi <= 192, V.hi

def gemm_main_k1(A, c, R, extra):
    per = 4
    acc = R['acc']; af = R['af']; bf = R['bf']
    import gemm
    lines_before = len(A.lines)
    gemm_main(A, c, R)
    st = -1
    for i in range(lines_before, len(A.lines)):
        l = A.lines[i]
        if l.startswith("  ; ---- stage"):
            st = int(l.split()[-1])
        if l.startswith("  s_waitcnt vmcnt("):
            n = int(l[l.index("(")+1:l.index(")")])
            if st <= c.NSLOT - 2:
                n += extra
            A.lines[i] = f"  s_waitcnt vmcnt({n})"
```

```python
from common import *

CHUNK = 32768
NSLOT = 3

def attn_tile_code(A, R, t, nxt_k_addr, nxt_v_addr, koff, voff, it):
    pass

def gen_attention(A, R, ST):
    lane = R['lane']; t0, t1 = R['t0'], R['t1']
    sw = R['s_wave']; st0, st1 = R['st0'], R['st1']; SWS = R['srd_ws']
    qf = R['qf']; O = R['O']; L = R['L']; negm = R['negm']; S = R['S']; P = R['P']; KF = R['KF']; VF = R['VF']; ones = R['ones']
    A(f"  v_lshlrev_b32 v{R['dmaoff']}, 4, v{lane}")
    def issue(ch, cond_reg=False):
        slot = ch % NSLOT
        A(f"  s_lshl_b32 s{st0}, s{sw}, 12")
        A(f"  s_add_u32 m0, s{st0}, {slot*CHUNK}")
        A(f"  s_add_u32 s{st1}, s{st0}, {WS_KVF + ch*CHUNK}")
        for i in range(4):
            A(f"  buffer_load_dwordx4 v{R['dmaoff']}, s[{SWS}:{SWS+3}], s{st1} offen offset:{i*1024} lds")
    R['issue'] = issue
    A(f"  v_and_b32 v{t0}, 11, v{lane}")
    A(f"  v_and_b32 v{t0}, 3, v{lane}")
    A(f"  v_bfe_u32 v{t1}, v{lane}, 2, 1")
    A(f"  v_bfe_u32 v{R['t2']}, v{lane}, 4, 1")
    A(f"  v_xor_b32 v{t1}, v{t1}, v{R['t2']}")
    A(f"  v_or_b32 v{t0}, v{t0}, v{t1}")
    A(f"  v_cmp_eq_u32 vcc, 0, v{t0}")
    A(f"  v_mov_b32 v{t0}, 0x3f803f80")
    A(f"  s_nop 1")
    A(f"  v_cndmask_b32 v{ones}, 0, v{t0}, vcc")
    for i in range(1, 4):
        A(f"  v_mov_b32 v{ones+i}, v{ones}")

def attn_loop(A, R, ST, tag):
    lane = R['lane']; t0 = R['t0']
    qf = R['qf']; O = R['O']; L = R['L']; negm = R['negm']; S = R['S']; P = R['P']; KF = R['KF']; VF = R['VF']; ones = R['ones']
    issue = R['issue']
    rd0 = R['rd0']; rd1 = R['rd1']
    for i in range(16): A(f"  v_mov_b32 v{O+i}, 0")
    for i in range(4): A(f"  v_mov_b32 v{L+i}, 0")
    issue(0); issue(1)
    A(f"  s_waitcnt vmcnt(4)")
    A(f"  s_barrier")
    ST()
    lane16 = R['dmaoff']
    A(f"  v_add_u32 v{rd1}, 65536, v{lane16}")
    def rdaddr(T, frag):
        off = ((T // 8) % NSLOT) * CHUNK + (T % 8) * 4096 + frag * 1024
        if off >= 65536:
            return rd1, off - 65536
        return lane16, off
    def read_k(T):
        b = KF + 8 * (T % 2)
        for f in range(2):
            r, off = rdaddr(T, f)
            A(f"  ds_read_b128 {v(b+4*f,4)}, v{r} offset:{off}")
    def read_v(T):
        b = VF + 8 * (T % 2)
        for f in range(2):
            r, off = rdaddr(T, 2 + f)
            A(f"  ds_read_b128 {v(b+4*f,4)}, v{r} offset:{off}")
    def qk(T):
        sb = S + 16 * (T % 2); kb = KF + 8 * (T % 2)
        return [f"  v_mfma_f32_32x32x16_bf16 {v(sb,16)}, {v(kb,4)}, {v(qf,4)}, {v(negm,16)}",
                f"  v_mfma_f32_32x32x16_bf16 {v(sb,16)}, {v(kb+4,4)}, {v(qf+4,4)}, {v(sb,16)}"]
    read_k(0); read_k(1); read_v(0)
    A(f"  s_waitcnt lgkmcnt(4)")
    for l in qk(0): A(l)
    A.nop(16)
    NT = 64
    for T in range(NT):
        sb = S + 16 * (T % 2); pb = P + 8 * (T % 2); vb = VF + 8 * (T % 2)
        A(f"  ; ---- tile {T}")
        if T % 8 == 6 and T + 2 < NT:
            c1 = (T + 2) // 8
            inflight = 4 if (c1 + 1) * 8 < NT and c1 >= 1 and False else 0
            A(f"  s_waitcnt vmcnt(0)")
            A(f"  s_barrier")
            if c1 + 1 < NT // 8:
                issue(c1 + 1)
        qk_next = qk(T + 1) if T + 1 < NT else []
        ex = [f"  v_exp_f32 v{sb+i}, v{sb+i}" for i in range(16)]
        cv = [f"  v_cvt_pk_bf16_f32 v{pb+i}, v{sb+2*i}, v{sb+2*i+1}" for i in range(8)]
        pv = [f"  v_mfma_f32_32x32x16_bf16 {v(O,16)}, {v(vb,4)}, {v(pb,4)}, {v(O,16)}",
              f"  v_mfma_f32_32x32x16_bf16 {v(O,16)}, {v(vb+4,4)}, {v(pb+4,4)}, {v(O,16)}"]
        sm = [f"  v_mfma_f32_16x16x32_bf16 {v(L,4)}, {v(ones,4)}, {v(pb,4)}, {v(L,4)}",
              f"  v_mfma_f32_16x16x32_bf16 {v(L,4)}, {v(ones,4)}, {v(pb+4,4)}, {v(L,4)}"]
        if qk_next:
            A(f"  s_waitcnt lgkmcnt(2)")
            A(qk_next[0])
        for i in range(0, 4): A(ex[i])
        if qk_next: A(qk_next[1])
        for i in range(4, 8): A(ex[i])
        if T + 2 < NT: read_k(T + 2)
        A(cv[0]); A(cv[1]); A(cv[2])
        for i in range(8, 10): A(ex[i])
        A(cv[3])
        for i in range(10, 12): A(ex[i])
        nk = 2 if T + 2 < NT else 0
        A(f"  s_waitcnt lgkmcnt({nk})")
        A(pv[0])
        for i in range(12, 16): A(ex[i])
        A(sm[0])
        A(cv[4]); A(cv[5]); A(cv[6])
        A(f"  s_nop 0")
        A(cv[7])
        if T + 1 < NT: read_v(T + 1)
        A(f"  s_nop 1")
        A(pv[1])
        A(sm[1])
    A.nop(16)

def gen_k2(A, name="k2_kernel"):
    kernel_header(A, name)
    EXIT = f"{name}_exit"
    prologue(A, 256, EXIT)
    ST = Stamps(A, 1)
    ST(real=True); ST()
    V = Alloc(1, 256, "v")
    R = {}
    for n in ['lane', 't0', 't1', 't2', 't3', 'dmaoff', 'rd0', 'rd1', 'tid']:
        R[n] = V()
    R['qf'] = V(8, 4); R['O'] = V(16, 4); R['L'] = V(4, 4); R['negm'] = V(16, 4); R['S'] = V(32, 4); R['P'] = V(16, 4)
    R['KF'] = V(16, 4); R['VF'] = V(16, 4); R['ones'] = V(4, 4)
    R.update(s_wave=4, s_rb=5, s_hg=6, st0=7, st1=3, srd_ws=28)
    SWS = 28
    lane = R['lane']; t0, t1, t2, t3 = R['t0'], R['t1'], R['t2'], R['t3']
    A(f"  v_mov_b32 v{R['tid']}, v0")
    wave_id(A, R['s_wave'], lane, t0)
    wg_map(A, R['s_rb'], R['s_hg'], R['st0'])
    A("  s_waitcnt lgkmcnt(0)")
    srd(A, SWS, 'ws', WS_SIZE)
    A(f"  s_lshl_b32 s{R['st0']}, s2, 3")
    A(f"  s_add_u32 s{R['st0']}, s{R['st0']}, s{R['s_wave']}")
    A(f"  s_lshl_b32 s{R['st0']}, s{R['st0']}, 11")
    A(f"  v_lshlrev_b32 v{t0}, 4, v{lane}")
    A(f"  buffer_load_dwordx4 {v(R['qf'],4)}, v{t0}, s[{SWS}:{SWS+3}], s{R['st0']} offen")
    A(f"  buffer_load_dwordx4 {v(R['qf']+4,4)}, v{t0}, s[{SWS}:{SWS+3}], s{R['st0']} offen offset:1024")
    gen_attention(A, R, ST)
    for i in range(16): A(f"  v_mov_b32 v{R['negm']+i}, 0")
    attn_loop(A, R, ST, "p1")
    ST()
    O = R['O']; L = R['L']
    A(f"  v_rcp_f32 v{t0}, v{L}")
    A(f"  s_nop 0")
    for i in range(16):
        A(f"  v_mul_f32 v{O+i}, v{t0}, v{O+i}")
    P = R['P']
    for i in range(8):
        A(f"  v_cvt_pk_bf16_f32 v{P+i}, v{O+2*i}, v{O+2*i+1}")
    A(f"  s_and_b32 s{R['st0']}, s{R['s_wave']}, 1")
    A(f"  s_lshl_b32 s{R['st0']}, s{R['st0']}, 5")
    A(f"  s_lshl_b32 s{R['st1']}, s{R['s_rb']}, 6")
    A(f"  s_add_u32 s{R['st0']}, s{R['st0']}, s{R['st1']}")
    A(f"  v_and_b32 v{t0}, 31, v{lane}")
    A(f"  v_add_u32 v{t0}, s{R['st0']}, v{t0}")
    A(f"  v_lshlrev_b32 v{t0}, 11, v{t0}")
    A(f"  v_lshrrev_b32 v{t1}, 5, v{lane}")
    A(f"  v_lshlrev_b32 v{t1}, 5, v{t1}")
    A(f"  v_add_u32 v{t0}, v{t0}, v{t1}")
    A(f"  s_lshr_b32 s{R['st0']}, s{R['s_wave']}, 1")
    A(f"  s_lshl_b32 s{R['st1']}, s{R['s_hg']}, 2")
    A(f"  s_add_u32 s{R['st0']}, s{R['st0']}, s{R['st1']}")
    A(f"  s_lshl_b32 s{R['st0']}, s{R['st0']}, 6")
    A(f"  s_add_u32 s{R['st0']}, s{R['st0']}, {WS_O}")
    A(f"  buffer_store_dwordx4 {v(P,4)}, v{t0}, s[{SWS}:{SWS+3}], s{R['st0']} offen")
    A(f"  buffer_store_dwordx4 {v(P+4,4)}, v{t0}, s[{SWS}:{SWS+3}], s{R['st0']} offen offset:16")
    ST()
    import conv
    conv.gen_conv(A, R, V, ST)
    ST(); ST(real=True)
    ST.flush(R['s_wave'], SWS, t0, t1)
    A.label(EXIT)
    A("  s_endpgm")
    kernel_desc(A, name, 256, 102, 256)
```

```python
from common import *
from gemm import *

def gen_k3(A, name="k3_kernel"):
    kernel_header(A, name)
    EXIT = f"{name}_exit"
    prologue(A, 256, EXIT)
    ST = Stamps(A, 2)
    ST(real=True); ST()
    c = GemmCfg(with_kv=False, nslots=6)
    ZOFF = c.STAGE * c.NSLOT
    V = Alloc(1, 256, "v")
    R = {}
    for n in ['lane', 't0', 't1', 't2', 't3', 'xoff', 'woff0', 'woff1', 'abase', 'aaddr', 'tid']:
        R[n] = V()
    R['bbase'] = V(4); R['baddr'] = V(4)
    R['acc'] = V(16, 4); R['af'] = V(16, 4); R['bf'] = V(16, 4)
    qx = V(8, 4); gg = V(); zoff = V(); ooff = V()
    R.update(s_wave=4, s_rb=5, s_hg=6, st0=7, st1=3, srd_x=8, srd_w=12)
    SWS, SQ, SO = 28, 20, 24
    lane = R['lane']; t0, t1, t2, t3 = R['t0'], R['t1'], R['t2'], R['t3']
    st0, st1 = R['st0'], R['st1']
    wave_id(A, R['s_wave'], lane, t0)
    wg_map(A, R['s_rb'], R['s_hg'], st0)
    A("  s_waitcnt lgkmcnt(0)")
    srd(A, R['srd_x'], 'ws', 4*MB, off=WS_O)
    srd(A, R['srd_w'], 'wo', 2*MB)
    srd(A, SWS, 'ws', WS_SIZE)
    srd(A, SQ, 'q', 4*MB)
    srd(A, SO, 'out', 4*MB)
    gemm_setup(A, c, R, perm_cols=False)
    for st in range(c.NSLOT - 1):
        gemm_issue(A, c, R, st)
    A(f"  v_lshrrev_b32 v{t0}, 3, v{lane}")
    A(f"  s_lshl_b32 s{st0}, s{R['s_wave']}, 4")
    A(f"  s_lshl_b32 s{st1}, s{R['s_hg']}, 7")
    A(f"  s_add_u32 s{st0}, s{st0}, s{st1}")
    A(f"  v_add_u32 v{t0}, s{st0}, v{t0}")
    A(f"  v_lshlrev_b32 v{t0}, 12, v{t0}")
    A(f"  v_and_b32 v{t1}, 7, v{lane}")
    A(f"  v_lshlrev_b32 v{t1}, 4, v{t1}")
    A(f"  v_add_u32 v{zoff}, v{t0}, v{t1}")
    A(f"  s_lshl_b32 s{st0}, s{R['s_wave']}, 11")
    A(f"  s_add_u32 m0, s{st0}, {ZOFF}")
    A(f"  s_lshl_b32 s{st1}, s{R['s_rb']}, 7")
    A(f"  s_add_u32 s{st1}, s{st1}, {WS_ZT}")
    A(f"  buffer_load_dwordx4 v{zoff}, s[{SWS}:{SWS+3}], s{st1} offen lds")
    A(f"  s_add_u32 m0, m0, 1024")
    A(f"  s_add_u32 s{st1}, s{st1}, {8*4096}")
    A(f"  buffer_load_dwordx4 v{zoff}, s[{SWS}:{SWS+3}], s{st1} offen lds")
    A(f"  s_and_b32 s{st0}, s{R['s_wave']}, 1")
    A(f"  s_lshl_b32 s{st0}, s{st0}, 5")
    A(f"  s_lshl_b32 s{st1}, s{R['s_rb']}, 6")
    A(f"  s_add_u32 s{st0}, s{st0}, s{st1}")
    A(f"  v_and_b32 v{t0}, 31, v{lane}")
    A(f"  v_add_u32 v{t0}, s{st0}, v{t0}")
    A(f"  v_lshlrev_b32 v{t2}, 2, v{t0}")
    A(f"  v_lshlrev_b32 v{t0}, 11, v{t0}")
    A(f"  v_lshrrev_b32 v{t1}, 5, v{lane}")
    A(f"  v_lshlrev_b32 v{t1}, 3, v{t1}")
    A(f"  v_add_u32 v{t0}, v{t0}, v{t1}")
    A(f"  s_lshr_b32 s{st0}, s{R['s_wave']}, 1")
    A(f"  s_lshl_b32 s{st0}, s{st0}, 6")
    A(f"  s_lshl_b32 s{st1}, s{R['s_hg']}, 8")
    A(f"  s_add_u32 s{st0}, s{st0}, s{st1}")
    A(f"  v_add_u32 v{ooff}, s{st0}, v{t0}")
    for g4 in range(4):
        A(f"  buffer_load_dwordx2 {v(qx+2*g4,2)}, v{ooff}, s[{SQ}:{SQ+3}], 0 offen offset:{16*g4}")
    A(f"  s_mov_b32 s{st0}, {WS_G}")
    A(f"  buffer_load_dword v{gg}, v{t2}, s[{SWS}:{SWS+3}], s{st0} offen")
    extra = 2 + 4 + 1
    for i in range(16): A(f"  v_mov_b32 v{R['acc']+i}, 0")
    ST()
    lb = len(A.lines)
    gemm_main(A, c, R)
    st = -1
    for i in range(lb, len(A.lines)):
        l = A.lines[i]
        if l.startswith("  ; ---- stage"): st = int(l.split()[-1])
        if l.startswith("  s_waitcnt vmcnt("):
            n = int(l[l.index("(")+1:l.index(")")])
            if st <= c.NSLOT - 2: n += extra
            A.lines[i] = f"  s_waitcnt vmcnt({n})"
    ST()
    acc = R['acc']; zf = R['af']
    A(f"  v_bfe_u32 v{t0}, v{lane}, 2, 2")
    A(f"  v_lshrrev_b32 v{t1}, 5, v{lane}")
    A(f"  v_lshlrev_b32 v{t1}, 2, v{t1}")
    A(f"  v_add_u32 v{t0}, v{t0}, v{t1}")
    A(f"  s_lshr_b32 s{st0}, s{R['s_wave']}, 1")
    A(f"  s_lshl_b32 s{st0}, s{st0}, 5")
    A(f"  v_add_u32 v{t0}, s{st0}, v{t0}")
    A(f"  v_lshlrev_b32 v{t0}, 7, v{t0}")
    A(f"  v_bfe_u32 v{t1}, v{lane}, 4, 1")
    A(f"  v_lshlrev_b32 v{t1}, 5, v{t1}")
    A(f"  v_add_u32 v{t0}, v{t0}, v{t1}")
    A(f"  v_and_b32 v{t1}, 3, v{lane}")
    A(f"  v_lshlrev_b32 v{t1}, 3, v{t1}")
    A(f"  v_add_u32 v{t0}, v{t0}, v{t1}")
    A(f"  s_and_b32 s{st0}, s{R['s_wave']}, 1")
    A(f"  s_lshl_b32 s{st0}, s{st0}, 6")
    A(f"  s_add_u32 s{st0}, s{st0}, {ZOFF}")
    A(f"  v_add_u32 v{t0}, s{st0}, v{t0}")
    for g4 in range(4):
        A(f"  ds_read_b64_tr_b16 {v(zf+2*g4,2)}, v{t0} offset:{g4*8*128}")
    A(f"  v_sub_f32 v{t2}, 1.0, v{gg}")
    A.nop(12)
    A(f"  s_waitcnt lgkmcnt(0)")
    zq = R['bf']
    for g4 in range(4):
        for e in range(4):
            src_z = zf + 2*g4 + (e >> 1); src_q = qx + 2*g4 + (e >> 1)
            if e & 1:
                A(f"  v_and_b32 v{zq}, 0xffff0000, v{src_z}")
                A(f"  v_and_b32 v{zq+1}, 0xffff0000, v{src_q}")
            else:
                A(f"  v_lshlrev_b32 v{zq}, 16, v{src_z}")
                A(f"  v_lshlrev_b32 v{zq+1}, 16, v{src_q}")
            A(f"  v_mul_f32 v{zq}, v{zq}, v{zq+1}")
            A(f"  v_mul_f32 v{zq}, v{zq}, v{gg}")
            r = acc + 4*g4 + e
            A(f"  v_fma_f32 v{r}, v{r}, v{t2}, v{zq}")
        A(f"  v_cvt_pk_bf16_f32 v{zq+2}, v{acc+4*g4}, v{acc+4*g4+1}")
        A(f"  v_cvt_pk_bf16_f32 v{zq+3}, v{acc+4*g4+2}, v{acc+4*g4+3}")
        A(f"  buffer_store_dwordx2 {v(zq+2,2)}, v{ooff}, s[{SO}:{SO+3}], 0 offen offset:{16*g4}")
        A(f"  s_nop 1")
    ST(); ST(real=True)
    ST.flush(R['s_wave'], SWS, t0, t1)
    A.label(EXIT)
    A("  s_endpgm")
    kernel_desc(A, name, 128, 102, 128)
    assert V.hi <= 128
```

```python
import sys
sys.path.insert(0, "gen")
import common
if "--prof" in sys.argv:
    common.PROF = True
    sys.argv.remove("--prof")
from common import *
import k1
try:
    import k2
except ImportError:
    k2 = None
try:
    import k3
except ImportError:
    k3 = None

HEADER = open("gated_mix__ssm_conv_h3__grouped_kv_mqa__prompt.s.ref").read().split("; Override launch")[0]

def build(which=("k1", "k2", "k3")):
    A = Asm()
    A(HEADER.rstrip("\n"))
    lds = {"k1": 163840, "k2": 163840, "k3": 163840}
    for k in which:
        A(f"; @launch kernel={k}_kernel grid=(256,1,1) block=(512,1,1) lds={lds[k]}")
    A('.amdgcn_target "amdgcn-amd-amdhsa--gfx950"')
    A(".text")
    for k in which:
        {"k1": k1.gen_k1, "k2": k2.gen_k2 if k2 else None, "k3": k3.gen_k3 if k3 else None}[k](A, f"{k}_kernel")
    return A.text()

if __name__ == "__main__":
    which = sys.argv[2].split(",") if len(sys.argv) > 2 else ["k1", "k2", "k3"]
    open(sys.argv[1], "w").write(build(which))
```

```python
from dsl import *

MB = 1 << 20
WS_QF = 0
WS_KVT = 4 * MB
WS_O = 8 * MB
WS_ZT = 12 * MB
WS_KVF = 16 * MB
WS_G = 16 * MB + 256 * 1024
WS_SIZE = 0x10000000

KA = dict(q=0, k=8, v=16, shift=24, ssmk=32, ssmD=40, bx=48, wq=56, wk=64, wv=72, wo=80, gate=88, out=96, dbg=104, ws=112)
PTR_BASE = 64
def ptr(name):
    return PTR_BASE + KA[name] // 4

QSCALE = 0.17677669529663687 * 1.4426950408889634

def f32bits(x):
    import struct
    return struct.unpack("<I", struct.pack("<f", x))[0]

def prologue(A, nwg, exit_label):
    A(f"  s_cmp_ge_u32 s2, {nwg}")
    A(f"  s_cbranch_scc1 {exit_label}")
    A(f"  s_load_dwordx16 s[64:79], s[0:1], 0")
    A(f"  s_load_dwordx8 s[80:87], s[0:1], 64")
    A(f"  s_load_dwordx4 s[88:91], s[0:1], 96")
    A(f"  s_load_dwordx2 s[92:93], s[0:1], 112")

def srd(A, dst, name, size, off=0):
    p = ptr(name)
    if off == 0:
        A(f"  s_mov_b32 s{dst}, s{p}")
        A(f"  s_mov_b32 s{dst+1}, s{p+1}")
    else:
        A(f"  s_add_u32 s{dst}, s{p}, {off}")
        A(f"  s_addc_u32 s{dst+1}, s{p+1}, 0")
    A(f"  s_mov_b32 s{dst+2}, {size}")
    A(f"  s_mov_b32 s{dst+3}, 0x20000")

def wg_map(A, s_rb, s_hg, tmp):
    A(f"  s_and_b32 s{s_rb}, s2, 7")
    A(f"  s_lshl_b32 s{s_rb}, s{s_rb}, 2")
    A(f"  s_lshr_b32 s{tmp}, s2, 3")
    A(f"  s_and_b32 s{tmp}, s{tmp}, 3")
    A(f"  s_add_u32 s{s_rb}, s{s_rb}, s{tmp}")
    A(f"  s_lshr_b32 s{s_hg}, s2, 5")

def wave_id(A, s_wave, v_lane, vtmp):
    A(f"  v_and_b32 v{v_lane}, 63, v0")
    A(f"  v_lshrrev_b32 v{vtmp}, 6, v0")
    A(f"  s_nop 1")
    A(f"  v_readfirstlane_b32 s{s_wave}, v{vtmp}")
    A(f"  s_nop 4")

def kernel_header(A, name):
    A(f".globl {name}")
    A(f".p2align 8")
    A(f".type {name},@function")
    A(f"{name}:")

def kernel_desc(A, name, nv, ns, accum):
    A(f'.section .rodata,"a"')
    A(f".p2align 6")
    A(f".amdhsa_kernel {name}")
    A(f"  .amdhsa_next_free_vgpr {nv}")
    A(f"  .amdhsa_next_free_sgpr {ns}")
    A(f"  .amdhsa_accum_offset {accum}")
    A(f"  .amdhsa_group_segment_fixed_size 0")
    A(f"  .amdhsa_kernarg_size 120")
    A(f"  .amdhsa_user_sgpr_count 2")
    A(f"  .amdhsa_user_sgpr_kernarg_segment_ptr 1")
    A(f"  .amdhsa_system_sgpr_workgroup_id_x 1")
    A(f".end_amdhsa_kernel")
    A(f".text")

PROF = False
WS_PROF = 24 * MB
class Stamps:
    def __init__(self, A, kidx):
        self.A = A; self.n = 0; self.kidx = kidx
    def __call__(self, real=False):
        if not PROF: return
        r = 40 + self.n
        assert r <= 59
        self.A(f"  s_mem{'real' if real else ''}time s[38:39]")
        self.A(f"  s_waitcnt lgkmcnt(0)")
        self.A(f"  s_mov_b32 s{r}, s38")
        self.n += 1
    def flush(self, s_wave, srd_ws, vt0, vt1):
        if not PROF: return
        A = self.A
        L = A.uniq("prof")
        A(f"  s_waitcnt lgkmcnt(0) vmcnt(0)")
        A(f"  s_lshl_b32 s3, s2, 3")
        A(f"  s_add_u32 s3, s3, s{s_wave}")
        A(f"  s_lshl_b32 s3, s3, 7")
        A(f"  s_add_u32 s3, s3, {WS_PROF + self.kidx * 0x80000}")
        A(f"  v_mov_b32 v{vt0}, 0")
        for i in range(self.n):
            A(f"  v_mov_b32 v{vt1}, s{40+i}")
            A(f"  buffer_store_dword v{vt1}, v{vt0}, s[{srd_ws}:{srd_ws+3}], s3 offen offset:{4*i}")
        A(f"  s_waitcnt vmcnt(0)")
```

```python
from common import *
from gemm import GemmCfg, gemm_setup
from gemm2 import *
import k2 as K2
import conv as CONV
import os
OPT = set(os.environ.get('FOPT', '').split(','))

WS_FLAG = 17 * MB
F_KV, F_KVT, F_O, F_Z = 0, 1, 2, 3
FSTRIDE = 64
SPIN_LIMIT = 1 << 20
SC = " sc1"

def flag_off(kind): return WS_FLAG + kind * 256 * FSTRIDE

def publish(A, R, kind, all_waves=True):
    SWS = R['srd_ws']
    if all_waves:
        A(f"  s_waitcnt vmcnt(0)")
        A(f"  s_barrier")
    L = A.uniq("pub")
    A(f"  s_cmp_lg_u32 s{R['s_wave']}, 0")
    A(f"  s_cbranch_scc1 {L}")
    if not all_waves:
        A(f"  s_waitcnt vmcnt(0)")
    A(f"  s_lshl_b32 s{R['st0']}, s2, 6")
    A(f"  s_add_u32 s{R['st0']}, s{R['st0']}, {flag_off(kind)}")
    A(f"  v_mov_b32 v{R['t0']}, 0")
    A(f"  v_mov_b32 v{R['t1']}, s{R['s_tag']}")
    A(f"  s_mov_b64 exec, 1")
    A(f"  buffer_store_dword v{R['t1']}, v{R['t0']}, s[{SWS}:{SWS+3}], s{R['st0']} offen sc1")
    A(f"  s_mov_b64 exec, -1")
    A.label(L)

def wait_flags(A, R, kind, mode):
    SWS = R['srd_ws']; lane = R['lane']; t0, t1, t2, t3 = R['t0'], R['t1'], R['t2'], R['t3']
    L = A.uniq("wt"); LP = A.uniq("poll"); LD = A.uniq("pd")
    A(f"  s_cmp_lg_u32 s{R['s_wave']}, 0")
    A(f"  s_cbranch_scc1 {L}")
    if mode == 'all':
        A(f"  v_lshlrev_b32 v{t0}, 6, v{lane}")
        A(f"  s_mov_b32 s{R['st0']}, {flag_off(kind)}")
    elif mode == 'grp32':
        A(f"  v_and_b32 v{t0}, 31, v{lane}")
        A(f"  v_lshlrev_b32 v{t0}, 6, v{t0}")
        A(f"  s_lshr_b32 s{R['st0']}, s2, 5")
        A(f"  s_lshl_b32 s{R['st0']}, s{R['st0']}, 11")
        A(f"  s_add_u32 s{R['st0']}, s{R['st0']}, {flag_off(kind)}")
    else:
        A(f"  v_and_b32 v{t0}, 7, v{lane}")
        A(f"  v_lshlrev_b32 v{t0}, 11, v{t0}")
        A(f"  s_and_b32 s{R['st0']}, s2, 31")
        A(f"  s_lshl_b32 s{R['st0']}, s{R['st0']}, 6")
        A(f"  s_add_u32 s{R['st0']}, s{R['st0']}, {flag_off(kind)}")
    A(f"  s_mov_b32 s{R['st1']}, 0")
    A.label(LP)
    n = 4 if mode == 'all' else 1
    fl = R['fl']
    for i in range(n):
        if i == 0:
            A(f"  buffer_load_dword v{fl}, v{t0}, s[{SWS}:{SWS+3}], s{R['st0']} offen sc1")
        else:
            A(f"  v_add_u32 v{t1}, {i*4096}, v{t0}")
            A(f"  buffer_load_dword v{fl+i}, v{t1}, s[{SWS}:{SWS+3}], s{R['st0']} offen sc1")
    A(f"  s_waitcnt vmcnt(0)")
    A(f"  v_xor_b32 v{fl}, s{R['s_tag']}, v{fl}")
    for i in range(1, n):
        A(f"  v_xor_b32 v{fl+i}, s{R['s_tag']}, v{fl+i}")
        A(f"  v_or_b32 v{fl}, v{fl}, v{fl+i}")
    A(f"  v_cmp_ne_u32 vcc, 0, v{fl}")
    A(f"  s_nop 4")
    A(f"  s_cmp_eq_u64 vcc, 0")
    A(f"  s_cbranch_scc1 {LD}")
    A(f"  s_add_u32 s{R['st1']}, s{R['st1']}, 1")
    A(f"  s_cmp_lt_u32 s{R['st1']}, {SPIN_LIMIT}")
    A(f"  s_sleep 1")
    A(f"  s_cbranch_scc1 {LP}")
    A.label(LD)
    A.label(L)
    A(f"  s_barrier")

def get_tag(A, R):
    SD = R['srd_dbg']; t0, t1 = R['t0'], R['t1']
    L = A.uniq("tg"); LP = A.uniq("tgp"); LD = A.uniq("tgd")
    A(f"  s_cmp_lg_u32 s{R['s_wave']}, 0")
    A(f"  s_cbranch_scc1 {L}")
    A(f"  s_mov_b32 s{R['st1']}, 0")
    A(f"  v_mov_b32 v{t0}, 0")
    A.label(LP)
    A(f"  buffer_load_dword v{t1}, v{t0}, s[{SD}:{SD+3}], 0 offen sc1")
    A(f"  s_waitcnt vmcnt(0)")
    A(f"  v_readfirstlane_b32 s{R['s_tag']}, v{t1}")
    A(f"  s_nop 4")
    A(f"  s_cmp_lg_u32 s{R['s_tag']}, 0")
    A(f"  s_cbranch_scc1 {LD}")
    A(f"  s_add_u32 s{R['st1']}, s{R['st1']}, 1")
    A(f"  s_cmp_lt_u32 s{R['st1']}, {SPIN_LIMIT}")
    A(f"  s_sleep 1")
    A(f"  s_cbranch_scc1 {LP}")
    A.label(LD)
    A.label(L)

def gen_fused(A, name):
    kernel_header(A, name)
    EXIT = f"{name}_exit"
    prologue(A, 256, EXIT)
    ST = Stamps(A, 0)
    ST(real=True); ST()
    V = Alloc(1, 256, "v")
    R = {}
    for n in ['lane', 't0', 't1', 't2', 't3', 'tid', 'gval']:
        R[n] = V()
    R['fl'] = V(4)
    R['qf'] = V(8, 4)
    R.update(s_wave=4, s_rb=5, s_hg=6, st0=7, st1=3, s_mask=94, srd_x=8, srd_w=12, srd_w2=16, srd_ws=28, srd_dbg=96,
             s_tag=100, s_w1024=33, s_w2048=34, s_kst=35, s_gst=36)
    SK, SV, SWS, SSH, SG = 20, 24, 28, 96, 16
    lane = R['lane']; t0, t1, t2, t3 = R['t0'], R['t1'], R['t2'], R['t3']; tid = R['tid']
    st0, st1 = R['st0'], R['st1']; sw = R['s_wave']
    A(f"  v_mov_b32 v{tid}, v0")
    wave_id(A, sw, lane, t0)
    wg_map(A, R['s_rb'], R['s_hg'], st0)
    A(f"  s_lshl_b32 s{R['s_w1024']}, s{sw}, 10")
    A(f"  s_lshl_b32 s{R['s_w2048']}, s{sw}, 11")
    if 'norot' in OPT:
        A(f"  s_mov_b32 s{R['s_kst']}, 0")
    else:
        A(f"  s_and_b32 s{R['s_kst']}, s2, 7")
        A(f"  s_lshl_b32 s{R['s_kst']}, s{R['s_kst']}, 1")
    A(f"  s_lshl_b32 s{R['s_gst']}, s{R['s_kst']}, 9")
    A(f"  s_mov_b32 s37, s{R['s_kst']}")
    A("  s_waitcnt lgkmcnt(0)")
    srd(A, R['srd_x'], 'q', 4*MB)
    srd(A, R['srd_w'], 'wq', 2*MB)
    srd(A, SWS, 'ws', WS_SIZE)
    mA = V.mark()
    c = GemmCfg(with_kv=True)
    for n in ['xoff', 'woff0', 'woff1', 'w2off', 'abase', 'aaddr', 'x16base', 'x16addr', 'w2base', 'w2addr', 'w2inc']:
        R[n] = V()
    R['bbase'] = V(4); R['baddr'] = V(4)
    R['acc'] = V(16, 4); R['acc16'] = V(4, 4)
    R['af'] = V(32, 4); R['bf'] = V(32, 4); R['x16f'] = V(8, 4); R['w2f'] = V(8, 4)
    kr = V(20, 4); vr = V(8, 4); wr = V(16, 4); gw = V(1); po = V(1)
    srd(A, SG, 'gate', 2048)
    A(f"  v_lshlrev_b32 v{t0}, 2, v{tid}")
    A(f"  buffer_load_dword v{gw}, v{t0}, s[{SG}:{SG+3}], 0 offen")
    srd(A, R['srd_dbg'], 'dbg', 256)
    Ln = A.uniq("nonce")
    A(f"  s_or_b32 s{st0}, s2, s{sw}")
    A(f"  s_cmp_lg_u32 s{st0}, 0")
    A(f"  s_cbranch_scc1 {Ln}")
    A(f"  s_memrealtime s[38:39]")
    A(f"  s_waitcnt lgkmcnt(0)")
    A(f"  s_or_b32 s38, s38, 1")
    A(f"  v_mov_b32 v{t1}, s38")
    A(f"  v_mov_b32 v{t0}, 0")
    A(f"  s_mov_b64 exec, 1")
    A(f"  buffer_store_dword v{t1}, v{t0}, s[{R['srd_dbg']}:{R['srd_dbg']+3}], 0 offen sc1")
    A(f"  s_mov_b64 exec, -1")
    A(f"  s_waitcnt vmcnt(0)")
    A.label(Ln)
    gemm_setup(A, c, R, perm_cols=True)
    A(f"  s_waitcnt vmcnt(0)")
    A(f"  s_cmp_lt_u32 s{R['s_hg']}, 4")
    A(f"  s_cselect_b32 s16, s{ptr('wk')}, s{ptr('wv')}")
    A(f"  s_cselect_b32 s17, s{ptr('wk')+1}, s{ptr('wv')+1}")
    A(f"  s_mov_b32 s18, 65536")
    A(f"  s_mov_b32 s19, 0x20000")
    gemm_prologue_issue(A, c, R, c.NSLOT)
    A(f"  v_lshlrev_b32 v{t0}, 4, v{tid}")
    A(f"  v_add_u32 v{t0}, {c.G4_OFF}, v{t0}")
    A(f"  v_and_b32 v{t1}, 0xffff, v{gw}")
    A(f"  v_lshrrev_b32 v{t2}, 16, v{gw}")
    A(f"  ds_write_b32 v{t0}, v{t1}")
    A(f"  ds_write_b32 v{t0}, v{t1} offset:4")
    A(f"  ds_write_b32 v{t0}, v{t2} offset:8")
    A(f"  ds_write_b32 v{t0}, v{t2} offset:12")
    srd(A, SK, 'k', 4*MB)
    srd(A, SV, 'v', 4*MB)
    SSH2 = 60
    srd(A, SSH2, 'shift', 8192)
    A(f"  v_lshrrev_b32 v{t0}, 4, v{tid}")
    A(f"  v_lshlrev_b32 v{t0}, 1, v{t0}")
    A(f"  s_lshl_b32 s{st0}, s{R['s_rb']}, 6")
    A(f"  v_add_u32 v{t0}, s{st0}, v{t0}")
    A(f"  v_and_b32 v{t1}, 15, v{tid}")
    A(f"  v_lshlrev_b32 v{t2}, 4, v{t1}")
    A(f"  s_lshl_b32 s{st0}, s{R['s_hg']}, 8")
    A(f"  v_add_u32 v{t2}, s{st0}, v{t2}")
    A(f"  v_lshlrev_b32 v{t0}, 11, v{t0}")
    A(f"  v_add_u32 v{po}, v{t0}, v{t2}")
    for j in range(5):
        A(f"  v_add_u32 v{t0}, {(j-3)*2048 & 0xffffffff}, v{po}")
        A(f"  buffer_load_dwordx4 {v(kr+4*j,4)}, v{t0}, s[{SK}:{SK+3}], 0 offen")
    for j in range(2):
        A(f"  buffer_load_dwordx4 {v(vr+4*j,4)}, v{po}, s[{SV}:{SV+3}], 0 offen offset:{j*2048}")
    A(f"  v_lshlrev_b32 v{t2}, 2, v{t2}")
    for j in range(4):
        A(f"  buffer_load_dwordx4 {v(wr+4*j,4)}, v{t2}, s[{SSH2}:{SSH2+3}], 0 offen offset:{j*16}")
    for i in range(16): A(f"  v_mov_b32 v{R['acc']+i}, 0")
    for i in range(4): A(f"  v_mov_b32 v{R['acc16']+i}, 0")
    A(f"  s_waitcnt lgkmcnt(0)")
    ST()
    gemm_main2(A, c, R, extra_vm=11)
    ST()
    a16 = R['acc16']
    A(f"  s_barrier")
    A(f"  s_and_b32 s{st0}, s{sw}, 3")
    A(f"  s_lshl_b32 s{st0}, s{st0}, 10")
    A(f"  s_lshr_b32 s{st1}, s{sw}, 2")
    A(f"  s_lshl_b32 s{st1}, s{st1}, 12")
    A(f"  s_add_u32 s{st0}, s{st0}, s{st1}")
    A(f"  v_lshrrev_b32 v{t0}, 4, v{lane}")
    A(f"  v_lshlrev_b32 v{t0}, 8, v{t0}")
    A(f"  v_and_b32 v{t1}, 15, v{lane}")
    A(f"  v_lshlrev_b32 v{t1}, 2, v{t1}")
    A(f"  v_add_u32 v{t0}, v{t0}, v{t1}")
    A(f"  v_add_u32 v{t0}, s{st0}, v{t0}")
    A.nop(8)
    for r in range(4):
        A(f"  ds_write_b32 v{t0}, v{a16+r} offset:{r*64}")
    A(f"  s_waitcnt lgkmcnt(0)")
    A(f"  s_barrier")
    get_tag(A, R)
    L_notw0 = A.uniq("w0"); L_isV = A.uniq("isv"); L_st = A.uniq("kvst")
    x = R['af']; y = R['bf']
    A(f"  s_cmp_lg_u32 s{sw}, 0")
    A(f"  s_cbranch_scc1 {L_notw0}")
    A(f"  s_cmp_ge_u32 s{R['s_hg']}, 4")
    A(f"  s_cbranch_scc1 {L_isV}")
    A(f"  v_lshlrev_b32 v{t0}, 6, v{lane}")
    A(f"  ds_read_b128 {v(x,4)}, v{t0}")
    A(f"  ds_read_b128 {v(x+4,4)}, v{t0} offset:16")
    A(f"  ds_read_b128 {v(y,4)}, v{t0} offset:4096")
    A(f"  ds_read_b128 {v(y+4,4)}, v{t0} offset:4112")
    A(f"  v_and_b32 v{t0}, 0x13, v{lane}")
    A(f"  v_bfe_u32 v{t1}, v{lane}, 2, 1")
    A(f"  v_lshlrev_b32 v{t1}, 3, v{t1}")
    A(f"  v_or_b32 v{t0}, v{t0}, v{t1}")
    A(f"  v_bfe_u32 v{t1}, v{lane}, 3, 1")
    A(f"  v_lshlrev_b32 v{t1}, 2, v{t1}")
    A(f"  v_or_b32 v{t0}, v{t0}, v{t1}")
    A(f"  v_lshlrev_b32 v{t0}, 4, v{t0}")
    A(f"  v_lshrrev_b32 v{t1}, 5, v{lane}")
    A(f"  v_lshlrev_b32 v{t1}, 12, v{t1}")
    A(f"  v_add_u32 v{t0}, v{t0}, v{t1}")
    A(f"  s_lshl_b32 s{st0}, s{R['s_rb']}, 13")
    A(f"  s_lshl_b32 s{st1}, s{R['s_hg']}, 9")
    A(f"  s_add_u32 s{st0}, s{st0}, s{st1}")
    A(f"  s_add_u32 s{st0}, s{st0}, {WS_KVF}")
    A(f"  s_branch {L_st}")
    A.label(L_isV)
    A(f"  v_lshrrev_b32 v{t0}, 3, v{lane}")
    A(f"  v_lshlrev_b32 v{t0}, 9, v{t0}")
    A(f"  v_and_b32 v{t1}, 7, v{lane}")
    A(f"  v_lshlrev_b32 v{t1}, 2, v{t1}")
    A(f"  v_add_u32 v{t0}, v{t0}, v{t1}")
    for i in range(8):
        A(f"  ds_read_b32 v{x+i}, v{t0} offset:{i*64}")
    A(f"  s_waitcnt lgkmcnt(0)")
    for i in range(8):
        A(f"  ds_read_b32 v{y+i}, v{t0} offset:{4096+i*64}")
    A(f"  s_sub_u32 s{st0}, s{R['s_hg']}, 4")
    A(f"  s_lshl_b32 s{st0}, s{st0}, 3")
    A(f"  v_and_b32 v{t0}, 7, v{lane}")
    A(f"  v_add_u32 v{t0}, s{st0}, v{t0}")
    A(f"  v_and_b32 v{t1}, 3, v{t0}")
    A(f"  v_bfe_u32 v{t2}, v{t0}, 2, 2")
    A(f"  v_lshlrev_b32 v{t2}, 3, v{t2}")
    A(f"  v_or_b32 v{t1}, v{t1}, v{t2}")
    A(f"  v_bfe_u32 v{t2}, v{t0}, 4, 1")
    A(f"  v_lshlrev_b32 v{t2}, 2, v{t2}")
    A(f"  v_or_b32 v{t1}, v{t1}, v{t2}")
    A(f"  v_lshlrev_b32 v{t1}, 4, v{t1}")
    A(f"  v_lshrrev_b32 v{t0}, 3, v{lane}")
    A(f"  v_and_b32 v{t2}, 3, v{t0}")
    A(f"  v_lshlrev_b32 v{t2}, 9, v{t2}")
    A(f"  v_add_u32 v{t1}, v{t1}, v{t2}")
    A(f"  v_lshrrev_b32 v{t0}, 2, v{t0}")
    A(f"  v_lshlrev_b32 v{t0}, 12, v{t0}")
    A(f"  v_add_u32 v{t0}, v{t0}, v{t1}")
    A(f"  s_lshl_b32 s{st0}, s{R['s_rb']}, 13")
    A(f"  s_add_u32 s{st0}, s{st0}, {WS_KVF + 2048}")
    A.label(L_st)
    A(f"  s_waitcnt lgkmcnt(0)")
    for i in range(8):
        A(f"  v_add_f32 v{x+i}, v{x+i}, v{y+i}")
    for i in range(4):
        A(f"  v_cvt_pk_bf16_f32 v{y+i}, v{x+2*i}, v{x+2*i+1}")
    A(f"  buffer_store_dwordx4 {v(y,4)}, v{t0}, s[{SWS}:{SWS+3}], s{st0} offen{SC}")
    A.label(L_notw0)
    publish(A, R, F_KV, all_waves=False)
    ST()
    A(f"  s_and_b32 s{st0}, s{sw}, 1")
    A(f"  s_lshl_b32 s{st0}, s{st0}, 11")
    A(f"  v_and_b32 v{t0}, 31, v{lane}")
    A(f"  v_lshlrev_b32 v{t0}, 6, v{t0}")
    A(f"  v_add_u32 v{t0}, s{st0}, v{t0}")
    A(f"  ds_read_b32 v{t1}, v{t0} offset:32")
    A(f"  ds_read_b32 v{t2}, v{t0} offset:{4096+32}")
    g = R['gval']
    A(f"  s_waitcnt lgkmcnt(0)")
    A(f"  v_add_f32 v{g}, v{t1}, v{t2}")
    A(f"  v_cvt_pk_bf16_f32 v{g}, v{g}, v{g}")
    A(f"  v_lshlrev_b32 v{g}, 16, v{g}")
    A(f"  v_mul_f32 v{g}, {f32bits(-1.4426950408889634)}, v{g}")
    A(f"  v_exp_f32 v{g}, v{g}")
    A(f"  s_nop 0")
    A(f"  v_add_f32 v{g}, 1.0, v{g}")
    A(f"  v_rcp_f32 v{g}, v{g}")
    A(f"  s_nop 0")
    A(f"  v_cvt_pk_bf16_f32 v{g}, v{g}, v{g}")
    A(f"  v_lshlrev_b32 v{g}, 16, v{g}")
    acc = R['acc']; qf = R['qf']
    A(f"  s_mov_b32 s{st0}, {f32bits(QSCALE)}")
    for i in range(16):
        A(f"  v_mul_f32 v{acc+i}, s{st0}, v{acc+i}")
    for i in range(8):
        A(f"  v_cvt_pk_bf16_f32 v{qf+i}, v{acc+2*i}, v{acc+2*i+1}")
    A(f"  s_barrier")
    kf = R['af']; ks0 = R['af'] + 8; ks1 = R['af'] + 16; wf = R['bf']
    for d in range(8):
        for tp in range(4):
            src = wr + d*2 + (tp >> 1)
            if tp & 1: A(f"  v_and_b32 v{wf+d*4+tp}, 0xffff0000, v{src}")
            else:      A(f"  v_lshlrev_b32 v{wf+d*4+tp}, 16, v{src}")
    for j in range(5):
        for d in range(8):
            src = kr + 4*j + (d >> 1)
            if d & 1: A(f"  v_and_b32 v{kf+d}, 0xffff0000, v{src}")
            else:     A(f"  v_lshlrev_b32 v{kf+d}, 16, v{src}")
        for d in range(8):
            if j <= 3:
                tp = 3 - j
                if j == 0: A(f"  v_mul_f32 v{ks0+d}, v{kf+d}, v{wf+d*4+tp}")
                else:      A(f"  v_fma_f32 v{ks0+d}, v{kf+d}, v{wf+d*4+tp}, v{ks0+d}")
            if j >= 1:
                tp = 4 - j
                if j == 1: A(f"  v_mul_f32 v{ks1+d}, v{kf+d}, v{wf+d*4+tp}")
                else:      A(f"  v_fma_f32 v{ks1+d}, v{kf+d}, v{wf+d*4+tp}, v{ks1+d}")
    for (ks, row) in ((ks0, 0), (ks1, 1)):
        for d in range(0, 8, 2):
            A(f"  v_cvt_pk_bf16_f32 v{t3}, v{ks+d}, v{ks+d+1}")
            A(f"  v_lshlrev_b32 v{ks+d}, 16, v{t3}")
            A(f"  v_and_b32 v{ks+d+1}, 0xffff0000, v{t3}")
        for d in range(8):
            src = vr + 4*row + (d >> 1)
            if d & 1: A(f"  v_and_b32 v{kf+d}, 0xffff0000, v{src}")
            else:     A(f"  v_lshlrev_b32 v{kf+d}, 16, v{src}")
        for d in range(8):
            A(f"  v_mul_f32 v{ks+d}, v{ks+d}, v{kf+d}")
    SCR = 0
    A(f"  v_lshrrev_b32 v{t0}, 4, v{tid}")
    A(f"  v_sub_u32 v{t0}, 31, v{t0}")
    A(f"  v_lshrrev_b32 v{t1}, 2, v{t0}")
    A(f"  v_and_b32 v{t2}, 7, v{tid}")
    A(f"  v_xor_b32 v{t1}, v{t1}, v{t2}")
    A(f"  v_lshlrev_b32 v{t1}, 2, v{t1}")
    A(f"  v_and_b32 v{t0}, 3, v{t0}")
    A(f"  v_or_b32 v{t0}, v{t0}, v{t1}")
    A(f"  v_lshlrev_b32 v{t0}, 2, v{t0}")
    A(f"  v_and_b32 v{t1}, 15, v{tid}")
    A(f"  v_lshlrev_b32 v{t1}, 10, v{t1}")
    A(f"  v_add_u32 v{t0}, v{t0}, v{t1}")
    for d in range(8):
        A(f"  v_cvt_pk_bf16_f32 v{kf+d}, v{ks1+d}, v{ks0+d}")
    for d in range(8):
        A(f"  ds_write_b32 v{t0}, v{kf+d} offset:{d*128}")
    A(f"  s_waitcnt lgkmcnt(0)")
    A(f"  s_barrier")
    rd = kr
    A(f"  v_lshrrev_b32 v{t0}, 2, v{tid}")
    A(f"  v_bfe_u32 v{t1}, v{t0}, 3, 3")
    A(f"  v_and_b32 v{t2}, 3, v{tid}")
    A(f"  v_lshlrev_b32 v{t2}, 1, v{t2}")
    A(f"  v_xor_b32 v{t3}, v{t2}, v{t1}")
    A(f"  v_lshlrev_b32 v{t3}, 4, v{t3}")
    A(f"  v_lshlrev_b32 v{kf}, 7, v{t0}")
    A(f"  v_add_u32 v{kf+1}, v{kf}, v{t3}")
    A(f"  v_xor_b32 v{t3}, 16, v{t3}")
    A(f"  v_add_u32 v{kf+2}, v{kf}, v{t3}")
    A(f"  ds_read_b128 {v(rd,4)}, v{kf+1}")
    A(f"  ds_read_b128 {v(rd+4,4)}, v{kf+2}")
    A(f"  s_lshl_b32 s{st0}, s{R['s_hg']}, 7")
    A(f"  v_add_u32 v{t0}, s{st0}, v{t0}")
    A(f"  v_lshlrev_b32 v{t0}, 12, v{t0}")
    A(f"  v_lshlrev_b32 v{t2}, 4, v{t2}")
    A(f"  v_add_u32 v{t0}, v{t0}, v{t2}")
    A(f"  s_lshl_b32 s{st0}, s{R['s_rb']}, 7")
    A(f"  s_sub_u32 s{st0}, {WS_KVT + 1984*2}, s{st0}")
    A(f"  s_waitcnt lgkmcnt(0)")
    A(f"  buffer_store_dwordx4 {v(rd,4)}, v{t0}, s[{SWS}:{SWS+3}], s{st0} offen{SC}")
    A(f"  buffer_store_dwordx4 {v(rd+4,4)}, v{t0}, s[{SWS}:{SWS+3}], s{st0} offen offset:16{SC}")
    publish(A, R, F_KVT)
    ST()
    V.reset(mA)
    for n in ['dmaoff', 'rd0', 'rd1']: R[n] = V()
    R['O'] = V(16, 4); R['L'] = V(4, 4); R['negm'] = V(16, 4); R['S'] = V(32, 4); R['P'] = V(16, 4)
    R['KF'] = V(16, 4); R['VF'] = V(16, 4); R['ones'] = V(4, 4)
    K2.gen_attention(A, R, ST)
    for i in range(16): A(f"  v_mov_b32 v{R['negm']+i}, 0")
    wait_flags(A, R, F_KV, 'all')
    ST()
    class NoST:
        def __call__(self, *a, **k): pass
    K2.attn_loop(A, R, NoST(), "p1")
    ST()
    O = R['O']; L = R['L']; P = R['P']
    A(f"  s_setprio 0")
    A(f"  v_rcp_f32 v{t0}, v{L}")
    A(f"  s_nop 0")
    for i in range(16):
        A(f"  v_mul_f32 v{O+i}, v{t0}, v{O+i}")
    for i in range(8):
        A(f"  v_cvt_pk_bf16_f32 v{P+i}, v{O+2*i}, v{O+2*i+1}")
    A(f"  s_and_b32 s{st0}, s{sw}, 1")
    A(f"  s_lshl_b32 s{st0}, s{st0}, 5")
    A(f"  s_lshl_b32 s{st1}, s{R['s_rb']}, 6")
    A(f"  s_add_u32 s{st0}, s{st0}, s{st1}")
    A(f"  v_and_b32 v{t0}, 31, v{lane}")
    A(f"  v_add_u32 v{t0}, s{st0}, v{t0}")
    A(f"  v_lshlrev_b32 v{t0}, 11, v{t0}")
    A(f"  v_lshrrev_b32 v{t1}, 5, v{lane}")
    A(f"  v_lshlrev_b32 v{t1}, 5, v{t1}")
    A(f"  v_add_u32 v{t0}, v{t0}, v{t1}")
    A(f"  s_lshr_b32 s{st0}, s{sw}, 1")
    A(f"  s_lshl_b32 s{st1}, s{R['s_hg']}, 2")
    A(f"  s_add_u32 s{st0}, s{st0}, s{st1}")
    A(f"  s_lshl_b32 s{st0}, s{st0}, 6")
    A(f"  s_add_u32 s{st0}, s{st0}, {WS_O}")
    A(f"  buffer_store_dwordx4 {v(P,4)}, v{t0}, s[{SWS}:{SWS+3}], s{st0} offen{SC}")
    A(f"  buffer_store_dwordx4 {v(P+4,4)}, v{t0}, s[{SWS}:{SWS+3}], s{st0} offen offset:16{SC}")
    publish(A, R, F_O)
    ST()
    wait_flags(A, R, F_KVT, 'grp32')
    R['conv_free'] = mA
    CONV.gen_conv(A, R, V, NoST(), store_sc=SC)
    publish(A, R, F_Z)
    ST()
    V.reset(mA)
    c2 = GemmCfg(with_kv=False, nslots=6)
    ZOFF = c2.STAGE * c2.NSLOT
    for n in ['xoff', 'woff0', 'woff1', 'abase', 'aaddr']: R[n] = V()
    R['bbase'] = V(4); R['baddr'] = V(4)
    R['acc'] = V(16, 4); R['af'] = V(32, 4); R['bf'] = V(32, 4)
    qx = V(8, 4); zoff = V(); ooff = V()
    SQ, SO = 20, 24
    srd(A, R['srd_x'], 'ws', 4*MB, off=WS_O)
    srd(A, R['srd_w'], 'wo', 2*MB)
    srd(A, SQ, 'q', 4*MB)
    srd(A, SO, 'out', 4*MB)
    A(f"  s_mov_b32 s{R['s_kst']}, s37")
    gemm_setup(A, c2, R, perm_cols=False)
    A(f"  s_and_b32 s{st0}, s{sw}, 1")
    A(f"  s_lshl_b32 s{st0}, s{st0}, 5")
    A(f"  s_lshl_b32 s{st1}, s{R['s_rb']}, 6")
    A(f"  s_add_u32 s{st0}, s{st0}, s{st1}")
    A(f"  v_and_b32 v{t0}, 31, v{lane}")
    A(f"  v_add_u32 v{t0}, s{st0}, v{t0}")
    A(f"  v_lshlrev_b32 v{t0}, 11, v{t0}")
    A(f"  v_lshrrev_b32 v{t1}, 5, v{lane}")
    A(f"  v_lshlrev_b32 v{t1}, 3, v{t1}")
    A(f"  v_add_u32 v{t0}, v{t0}, v{t1}")
    A(f"  s_lshr_b32 s{st0}, s{sw}, 1")
    A(f"  s_lshl_b32 s{st0}, s{st0}, 6")
    A(f"  s_lshl_b32 s{st1}, s{R['s_hg']}, 8")
    A(f"  s_add_u32 s{st0}, s{st0}, s{st1}")
    A(f"  v_add_u32 v{ooff}, s{st0}, v{t0}")
    for g4 in range(4):
        A(f"  buffer_load_dwordx2 {v(qx+2*g4,2)}, v{ooff}, s[{SQ}:{SQ+3}], 0 offen offset:{16*g4}")
    for i in range(16): A(f"  v_mov_b32 v{R['acc']+i}, 0")
    wait_flags(A, R, F_O, 'rb8')
    A(f"  s_waitcnt vmcnt(0)")
    ST()
    gemm_prologue_issue(A, c2, R, c2.NSLOT)
    gemm_main2(A, c2, R, extra_vm=0)
    ST()
    wait_flags(A, R, F_Z, 'grp32')
    A(f"  v_lshrrev_b32 v{t0}, 3, v{lane}")
    A(f"  s_lshl_b32 s{st0}, s{sw}, 4")
    A(f"  s_lshl_b32 s{st1}, s{R['s_hg']}, 7")
    A(f"  s_add_u32 s{st0}, s{st0}, s{st1}")
    A(f"  v_add_u32 v{t0}, s{st0}, v{t0}")
    A(f"  v_lshlrev_b32 v{t0}, 12, v{t0}")
    A(f"  v_and_b32 v{t1}, 7, v{lane}")
    A(f"  v_lshlrev_b32 v{t1}, 4, v{t1}")
    A(f"  v_add_u32 v{zoff}, v{t0}, v{t1}")
    A(f"  s_add_u32 m0, s{R['s_w2048']}, {ZOFF}")
    A(f"  s_lshl_b32 s{st1}, s{R['s_rb']}, 7")
    A(f"  s_add_u32 s{st1}, s{st1}, {WS_ZT}")
    A(f"  buffer_load_dwordx4 v{zoff}, s[{SWS}:{SWS+3}], s{st1} offen lds")
    A(f"  s_add_u32 m0, m0, 1024")
    A(f"  s_add_u32 s{st1}, s{st1}, {8*4096}")
    A(f"  buffer_load_dwordx4 v{zoff}, s[{SWS}:{SWS+3}], s{st1} offen lds")
    acc = R['acc']; zf = R['af']
    A(f"  v_bfe_u32 v{t0}, v{lane}, 2, 2")
    A(f"  v_lshrrev_b32 v{t1}, 5, v{lane}")
    A(f"  v_lshlrev_b32 v{t1}, 2, v{t1}")
    A(f"  v_add_u32 v{t0}, v{t0}, v{t1}")
    A(f"  s_lshr_b32 s{st0}, s{sw}, 1")
    A(f"  s_lshl_b32 s{st0}, s{st0}, 5")
    A(f"  v_add_u32 v{t0}, s{st0}, v{t0}")
    A(f"  v_lshlrev_b32 v{t0}, 7, v{t0}")
    A(f"  v_bfe_u32 v{t1}, v{lane}, 4, 1")
    A(f"  v_lshlrev_b32 v{t1}, 5, v{t1}")
    A(f"  v_add_u32 v{t0}, v{t0}, v{t1}")
    A(f"  v_and_b32 v{t1}, 3, v{lane}")
    A(f"  v_lshlrev_b32 v{t1}, 3, v{t1}")
    A(f"  v_add_u32 v{t0}, v{t0}, v{t1}")
    A(f"  s_and_b32 s{st0}, s{sw}, 1")
    A(f"  s_lshl_b32 s{st0}, s{st0}, 6")
    A(f"  s_add_u32 s{st0}, s{st0}, {ZOFF}")
    A(f"  v_add_u32 v{t0}, s{st0}, v{t0}")
    A(f"  s_waitcnt vmcnt(0)")
    A(f"  s_barrier")
    for g4 in range(4):
        A(f"  ds_read_b64_tr_b16 {v(zf+2*g4,2)}, v{t0} offset:{g4*8*128}")
    gg = R['gval']
    A(f"  v_sub_f32 v{t2}, 1.0, v{gg}")
    A(f"  s_waitcnt lgkmcnt(0)")
    zq = R['bf']
    for g4 in range(4):
        for e in range(4):
            src_z = zf + 2*g4 + (e >> 1); src_q = qx + 2*g4 + (e >> 1)
            if e & 1:
                A(f"  v_and_b32 v{zq}, 0xffff0000, v{src_z}")
                A(f"  v_and_b32 v{zq+1}, 0xffff0000, v{src_q}")
            else:
                A(f"  v_lshlrev_b32 v{zq}, 16, v{src_z}")
                A(f"  v_lshlrev_b32 v{zq+1}, 16, v{src_q}")
            A(f"  v_mul_f32 v{zq}, v{zq}, v{zq+1}")
            A(f"  v_mul_f32 v{zq}, v{zq}, v{gg}")
            r = acc + 4*g4 + e
            A(f"  v_fma_f32 v{r}, v{r}, v{t2}, v{zq}")
        A(f"  v_cvt_pk_bf16_f32 v{zq+2}, v{acc+4*g4}, v{acc+4*g4+1}")
        A(f"  v_cvt_pk_bf16_f32 v{zq+3}, v{acc+4*g4+2}, v{acc+4*g4+3}")
        A(f"  buffer_store_dwordx2 {v(zq+2,2)}, v{ooff}, s[{SO}:{SO+3}], 0 offen offset:{16*g4}")
        A(f"  s_nop 1")
    ST(); ST(real=True)
    ST.flush(sw, SWS, t0, t1)
    A.label(EXIT)
    A("  s_endpgm")
    kernel_desc(A, name, 256, 102, 256)
```

```python
from common import *
from gemm import GemmCfg, gemm_setup

def gemm_issue2(A, c, R, st, sc=""):
    slot = st % c.NSLOT
    base = slot * c.STAGE + c.BASE
    sx, swd = R['srd_x'], R['srd_w']
    st1 = R['st1']
    g = []
    ks = R['korder'](st) if 'korder' in R else None
    g.append([f"  s_add_u32 m0, s{R['s_w1024']}, {base + c.X_OFF}",
              f"  s_lshl_b32 s{st1}, s{R['s_kst']}, 7",
              f"  buffer_load_dwordx4 v{R['xoff']}, s[{sx}:{sx+3}], s{st1} offen lds{sc}"])
    g.append([f"  s_add_u32 m0, s{R['s_w2048']}, {base + c.W_OFF}",
              f"  s_lshl_b32 s{st1}, s{R['s_kst']}, 17",
              f"  buffer_load_dwordx4 v{R['woff0']}, s[{swd}:{swd+3}], s{st1} offen lds"])
    g.append([f"  s_add_u32 m0, m0, 1024",
              f"  s_nop 0",
              f"  buffer_load_dwordx4 v{R['woff1']}, s[{swd}:{swd+3}], s{st1} offen lds"])
    if c.with_kv:
        s2w = R['srd_w2']
        g.append([f"  s_lshr_b32 m0, s{R['s_w1024']}, 3",
                  f"  s_add_u32 m0, m0, {base + c.W2_OFF}",
                  f"  s_lshl_b32 s{st1}, s{R['s_kst']}, 12",
                  f"  s_mov_b64 exec, 0xff",
                  f"  buffer_load_dwordx4 v{R['w2off']}, s[{s2w}:{s2w+3}], s{st1} offen lds",
                  f"  s_mov_b64 exec, -1"])
    g[-1] = g[-1] + [f"  s_add_u32 s{R['s_kst']}, s{R['s_kst']}, 1", f"  s_and_b32 s{R['s_kst']}, s{R['s_kst']}, 15"]
    return g

def gemm_reads(A, c, R, st):
    base = (st % c.NSLOT) * c.STAGE + c.BASE
    par = st % 2
    af = R['af'] + 16 * par; bf = R['bf'] + 16 * par
    A(f"  v_add_u32 v{R['aaddr']}, {base}, v{R['abase']}")
    for q in range(4):
        A(f"  v_add_u32 v{R['baddr']+q}, {base}, v{R['bbase']+q}")
    if c.with_kv:
        A(f"  v_add_u32 v{R['x16addr']}, {base}, v{R['x16base']}")
        A(f"  v_mov_b32 v{R['t0']}, {base}")
        A(f"  v_mov_b32 v{R['t1']}, s{R['s_gst']}")
        A(f"  s_add_u32 s{R['s_gst']}, s{R['s_gst']}, 512")
        A(f"  v_cndmask_b32 v{R['t0']}, v{R['t1']}, v{R['t0']}, s[{R['s_mask']}:{R['s_mask']+1}]")
        A(f"  s_and_b32 s{R['s_gst']}, s{R['s_gst']}, 8191")
        A(f"  v_add_u32 v{R['w2addr']}, v{R['t0']}, v{R['w2base']}")
    for q in range(4):
        A(f"  ds_read_b64_tr_b16 {v(af+4*q,2)}, v{R['aaddr']} offset:{q*4096}")
        A(f"  ds_read_b64_tr_b16 {v(af+4*q+2,2)}, v{R['aaddr']} offset:{q*4096+1024}")
        A(f"  ds_read_b128 {v(bf+4*q,4)}, v{R['baddr']+q}")
    if c.with_kv:
        x = R['x16f'] + 4 * par; w = R['w2f'] + 4 * par
        A(f"  ds_read_b128 {v(x,4)}, v{R['x16addr']}")
        A(f"  ds_read_b64_tr_b16 {v(w,2)}, v{R['w2addr']}")
        A(f"  v_add_u32 v{R['w2addr']}, v{R['w2inc']}, v{R['w2addr']}")
        A(f"  ds_read_b64_tr_b16 {v(w+2,2)}, v{R['w2addr']}")

def gemm_prologue_issue(A, c, R, nst, sc=""):
    for st in range(nst):
        for grp in gemm_issue2(A, c, R, st, sc):
            for l in grp: A(l)

def gemm_main2(A, c, R, extra_vm, sc="", first_issued=None):
    per = 4 if c.with_kv else 3
    NS = c.NSLOT
    acc = R['acc']
    A(f"  s_waitcnt vmcnt({per*(NS-1) + extra_vm})")
    A(f"  s_barrier")
    gemm_reads(A, c, R, 0)
    for st in range(c.NST):
        par = st % 2
        af = R['af'] + 16 * par; bf = R['bf'] + 16 * par
        A(f"  s_waitcnt lgkmcnt(0)")
        if st + 1 < c.NST:
            last_issued = min(c.NST - 1, st + NS - 1)
            n = per * (last_issued - (st + 1))
            if st + 1 <= NS - 1: n += extra_vm
            A(f"  s_waitcnt vmcnt({n})")
            A(f"  s_barrier")
            gemm_reads(A, c, R, st + 1)
        groups = gemm_issue2(A, c, R, st + NS, sc) if st + NS < c.NST else []
        mf = [f"  v_mfma_f32_32x32x16_bf16 {v(acc,16)}, {v(af+4*q,4)}, {v(bf+4*q,4)}, {v(acc,16)}" for q in range(4)]
        if c.with_kv:
            mf.append(f"  v_mfma_f32_16x16x32_bf16 {v(R['acc16'],4)}, {v(R['x16f']+4*par,4)}, {v(R['w2f']+4*par,4)}, {v(R['acc16'],4)}")
        for i, m in enumerate(mf):
            A(m)
            if i < len(groups):
                for l in groups[i]: A(l)
```

```python
from common import *
import os
OPT = set(os.environ.get('K2OPT', '').split(','))

CHUNK = 32768
NSLOT = 3

def attn_tile_code(A, R, t, nxt_k_addr, nxt_v_addr, koff, voff, it):
    pass

def gen_attention(A, R, ST):
    lane = R['lane']; t0, t1 = R['t0'], R['t1']
    sw = R['s_wave']; st0, st1 = R['st0'], R['st1']; SWS = R['srd_ws']
    qf = R['qf']; O = R['O']; L = R['L']; negm = R['negm']; S = R['S']; P = R['P']; KF = R['KF']; VF = R['VF']; ones = R['ones']
    A(f"  v_lshlrev_b32 v{R['dmaoff']}, 4, v{lane}")
    def issue(ch, cond_reg=False):
        slot = ch % NSLOT
        A(f"  s_lshl_b32 s{st0}, s{sw}, 12")
        A(f"  s_add_u32 m0, s{st0}, {slot*CHUNK}")
        A(f"  s_add_u32 s{st1}, s{st0}, {WS_KVF + ch*CHUNK}")
        for i in range(4):
            A(f"  buffer_load_dwordx4 v{R['dmaoff']}, s[{SWS}:{SWS+3}], s{st1} offen offset:{i*1024} lds")
    R['issue'] = issue
    A(f"  v_and_b32 v{t0}, 11, v{lane}")
    A(f"  v_and_b32 v{t0}, 3, v{lane}")
    A(f"  v_bfe_u32 v{t1}, v{lane}, 2, 1")
    A(f"  v_bfe_u32 v{R['t2']}, v{lane}, 4, 1")
    A(f"  v_xor_b32 v{t1}, v{t1}, v{R['t2']}")
    A(f"  v_or_b32 v{t0}, v{t0}, v{t1}")
    A(f"  v_cmp_eq_u32 vcc, 0, v{t0}")
    A(f"  v_mov_b32 v{t0}, 0x3f803f80")
    A(f"  s_nop 1")
    A(f"  v_cndmask_b32 v{ones}, 0, v{t0}, vcc")
    for i in range(1, 4):
        A(f"  v_mov_b32 v{ones+i}, v{ones}")

def attn_loop(A, R, ST, tag, after_last_dma=None):
    lane = R['lane']; t0 = R['t0']
    qf = R['qf']; O = R['O']; L = R['L']; negm = R['negm']; S = R['S']; P = R['P']; KF = R['KF']; VF = R['VF']; ones = R['ones']
    SWS = R['srd_ws']; sw = R['s_wave']
    cur = R['rd0']; nxt = R['rd1']
    lane16 = R['dmaoff']
    s_m0v = 24
    s_c, s_slot, s_goff, s_m0b = 20, 21, 22, 23
    RB = R.get('ring_base', 0)
    for i in range(16): A(f"  v_mov_b32 v{O+i}, 0")
    for i in range(4): A(f"  v_mov_b32 v{L+i}, 0")
    for i in range(16): A(f"  v_mov_b32 v{P+i}, 0")
    for i in range(16): A(f"  v_mov_b32 v{VF+i}, 0")
    A(f"  s_lshl_b32 s{s_m0b}, s{sw}, 12")
    def dma(slot_expr_sgpr=None, slot_const=None, goff_sgpr=None):
        if slot_const is not None:
            A(f"  s_add_u32 m0, s{s_m0b}, {RB + slot_const*CHUNK}")
        else:
            A(f"  s_add_u32 m0, s{s_m0b}, s{slot_expr_sgpr}")
        A(f"  s_nop 0")
        for i in range(4):
            A(f"  buffer_load_dwordx4 v{lane16}, s[{SWS}:{SWS+3}], s{goff_sgpr} offen offset:{i*1024} lds")
    A(f"  s_add_u32 s{s_goff}, s{s_m0b}, {WS_KVF}")
    dma(slot_const=0, goff_sgpr=s_goff)
    A(f"  s_add_u32 s{s_goff}, s{s_goff}, {CHUNK}")
    dma(slot_const=1, goff_sgpr=s_goff)
    A(f"  s_add_u32 s{s_goff}, s{s_goff}, {CHUNK}")
    A(f"  s_mov_b32 s{s_slot}, {RB + 2*CHUNK}")
    A(f"  s_mov_b32 s{s_c}, 0")
    A(f"  v_add_u32 v{cur}, {RB}, v{lane16}")
    A(f"  v_add_u32 v{nxt}, {RB + CHUNK}, v{lane16}")
    A(f"  s_waitcnt vmcnt(4)")
    A(f"  s_barrier")
    ST()
    def read_k(j2):
        b = KF + 8 * (j2 % 2)
        r, jj = (cur, j2) if j2 < 8 else (nxt, j2 - 8)
        for f in range(2):
            A(f"  ds_read_b128 {v(b+4*f,4)}, v{r} offset:{jj*4096 + f*1024}")
    def read_v(j):
        b = VF + 8 * (j % 2)
        for f in range(2):
            A(f"  ds_read_b128 {v(b+4*f,4)}, v{cur} offset:{j*4096 + (2+f)*1024}")
    def qk(par):
        sb = S + 16 * par; kb = KF + 8 * par
        cz = "0" if 'cz' in OPT else v(negm,16)
        return [f"  v_mfma_f32_32x32x16_bf16 {v(sb,16)}, {v(kb,4)}, {v(qf,4)}, {cz}",
                f"  v_mfma_f32_32x32x16_bf16 {v(sb,16)}, {v(kb+4,4)}, {v(qf+4,4)}, {v(sb,16)}"]
    def pv(par):
        pb = P + 8 * par; vb = VF + 8 * par
        return ([f"  v_mfma_f32_32x32x16_bf16 {v(O,16)}, {v(vb,4)}, {v(pb,4)}, {v(O,16)}",
                 f"  v_mfma_f32_32x32x16_bf16 {v(O,16)}, {v(vb+4,4)}, {v(pb+4,4)}, {v(O,16)}"],
                [f"  v_mfma_f32_16x16x32_bf16 {v(L,4)}, {v(ones,4)}, {v(pb,4)}, {v(L,4)}",
                 f"  v_mfma_f32_16x16x32_bf16 {v(L,4)}, {v(ones,4)}, {v(pb+4,4)}, {v(L,4)}"])
    read_k(0); read_k(1)
    A(f"  s_waitcnt lgkmcnt(2)")
    for l in qk(0): A(l)
    A.nop(16)
    LOOP = A.uniq("attn" + tag); NODMA = A.uniq("nodma")
    BALJ = int(os.environ.get('BALJ', '5'))
    if 'bal' in OPT:
        LP = A.uniq("prio"); LP2 = A.uniq("prio")
        A(f"  s_cmp_lt_u32 s{sw}, 4")
        A(f"  s_cbranch_scc1 {LP}")
        A(f"  s_setprio 1")
        A(f"  s_branch {LP2}")
        A.label(LP)
        A(f"  s_setprio 2")
        A.label(LP2)
    if 'prio' in OPT:
        LP = A.uniq("prio")
        A(f"  s_cmp_lt_u32 s{sw}, 4")
        A(f"  s_cbranch_scc1 {LP}")
        A(f"  s_setprio 1")
        A.label(LP)
    A(f".p2align 6")
    A.label(LOOP)
    for j in range(8):
        par = j % 2
        sb = S + 16 * par; pb = P + 8 * par
        A(f"  ; ---- tile {j}")
        if j == 6:
            A(f"  s_waitcnt vmcnt(0)")
            if 'nobar' not in OPT: A(f"  s_barrier")
            A(f"  s_add_u32 s{s_m0v}, s{s_m0b}, s{s_slot}")
            if 'bal' in OPT:
                Lb = A.uniq("bal")
                A(f"  s_cmp_ge_u32 s{sw}, 4")
                A(f"  s_cbranch_scc1 {Lb}")
                A(f"  s_setprio 2")
                A.label(Lb)
        if j == BALJ and 'bal' in OPT:
            Lb = A.uniq("bal")
            A(f"  s_cmp_ge_u32 s{sw}, 4")
            A(f"  s_cbranch_scc1 {Lb}")
            A(f"  s_setprio 0")
            A.label(Lb)
        A(f"  s_waitcnt lgkmcnt(0)")
        lb = len(A.lines)
        read_k(j + 2)
        read_v(j)
        rds = A.lines[lb:]; del A.lines[lb:]
        q = qk(1 - par)
        pvs, sms = pv(1 - par)
        e = [f"  v_exp_f32 v{sb+i}, v{sb+i}" for i in range(16)]
        c = [f"  v_cvt_pk_bf16_f32 v{pb+i}, v{sb+2*i}, v{sb+2*i+1}" for i in range(8)]
        seq = [q[0], e[0], e[1], e[2], pvs[0], e[3], e[4], e[5], q[1], e[6], e[7], c[0], c[1], sms[0],
               e[8], e[9], c[2], pvs[1], e[10], e[11], e[12], c[3], sms[1], e[13], e[14], e[15], c[4], c[5], c[6], c[7]]
        if 'ord2' in OPT:
            seq = [q[0], e[0], e[1], e[2], e[3], pvs[0], e[4], e[5], e[6], e[7], q[1], c[0], c[1], e[8], e[9], sms[0], c[2], c[3],
                   pvs[1], e[10], e[11], e[12], e[13], sms[1], e[14], e[15], c[4], c[5], c[6], c[7]]
        if 'ord3' in OPT:
            seq = [q[0], e[0], e[1], e[2], e[3], q[1], e[4], e[5], e[6], e[7], pvs[0], e[8], e[9], c[0], c[1], c[2], sms[0], e[10], e[11],
                   pvs[1], e[12], e[13], e[14], c[3], sms[1], e[15], c[4], c[5], c[6], c[7]]
        if 'nodep' in OPT:
            seq = [x if 'cvt' not in x else x.split(',')[0] + f", v{negm}, v{negm+1}" for x in seq]
        if 'nosum' in OPT: seq = [x for x in seq if '16x16x32' not in x]
        if 'nomfma' in OPT: seq = [x for x in seq if 'mfma' not in x]
        if 'noexp' in OPT: seq = [x for x in seq if 'v_exp' not in x]
        seq = [seq[0], rds[0]] + seq[1:4] + [seq[4], rds[1]] + seq[5:8] + [seq[8], rds[2]] + seq[9:13] + [seq[13], rds[3]] + seq[14:]
        if j in (6, 7) and 'nodma' not in OPT:
            def piece(i):
                Ls = A.uniq("nd")
                return [f"  s_cmp_ge_u32 s{s_c}, 6", f"  s_cbranch_scc1 {Ls}", f"  s_add_u32 m0, s{s_m0v}, 0", f"  s_nop 0",
                        f"  buffer_load_dwordx4 v{lane16}, s[{SWS}:{SWS+3}], s{s_goff} offen offset:{i*1024} lds", f"{Ls}:"]
            b = 2 * (j - 6)
            i5 = seq.index(pvs[1]); i6 = seq.index(sms[1])
            seq = seq[:i5+1] + piece(b) + seq[i5+1:i6+1] + piece(b + 1) + seq[i6+1:]
            if j == 7:
                seq += [f"  s_add_u32 s{s_goff}, s{s_goff}, {CHUNK}", f"  s_add_u32 s{s_slot}, s{s_slot}, {CHUNK}",
                        f"  s_cmp_eq_u32 s{s_slot}, {RB + 3*CHUNK}", f"  s_cselect_b32 s{s_slot}, {RB}, s{s_slot}"]
        for l in seq: A(l)
    A(f"  v_mov_b32 v{cur}, v{nxt}")
    A(f"  v_add_u32 v{nxt}, {CHUNK}, v{nxt}")
    A(f"  v_cmp_le_u32 vcc, {RB + 3*CHUNK}, v{nxt}")
    A(f"  v_subrev_u32 v{t0}, {3*CHUNK}, v{nxt}")
    A(f"  s_add_u32 s{s_c}, s{s_c}, 1")
    A(f"  v_cndmask_b32 v{nxt}, v{nxt}, v{t0}, vcc")
    A(f"  s_cmp_lt_u32 s{s_c}, 8")
    A(f"  s_cbranch_scc1 {LOOP}")
    pvs, sms = pv(1)
    A(f"  s_waitcnt lgkmcnt(0)")
    A(pvs[0]); A(sms[0]); A(pvs[1]); A(sms[1])
    A.nop(16)

def gen_k2(A, name="k2_kernel"):
    kernel_header(A, name)
    EXIT = f"{name}_exit"
    prologue(A, 256, EXIT)
    ST = Stamps(A, 1)
    ST(real=True); ST()
    V = Alloc(1, 256, "v")
    R = {}
    for n in ['lane', 't0', 't1', 't2', 't3', 'dmaoff', 'rd0', 'rd1', 'tid']:
        R[n] = V()
    R['qf'] = V(8, 4); R['O'] = V(16, 4); R['L'] = V(4, 4); R['negm'] = V(16, 4); R['S'] = V(32, 4); R['P'] = V(16, 4)
    R['KF'] = V(16, 4); R['VF'] = V(16, 4); R['ones'] = V(4, 4)
    R.update(s_wave=4, s_rb=5, s_hg=6, st0=7, st1=3, srd_ws=28)
    SWS = 28
    lane = R['lane']; t0, t1, t2, t3 = R['t0'], R['t1'], R['t2'], R['t3']
    A(f"  v_mov_b32 v{R['tid']}, v0")
    wave_id(A, R['s_wave'], lane, t0)
    wg_map(A, R['s_rb'], R['s_hg'], R['st0'])
    A("  s_waitcnt lgkmcnt(0)")
    srd(A, SWS, 'ws', WS_SIZE)
    A(f"  s_lshl_b32 s{R['st0']}, s2, 3")
    A(f"  s_add_u32 s{R['st0']}, s{R['st0']}, s{R['s_wave']}")
    A(f"  s_lshl_b32 s{R['st0']}, s{R['st0']}, 11")
    A(f"  v_lshlrev_b32 v{t0}, 4, v{lane}")
    A(f"  buffer_load_dwordx4 {v(R['qf'],4)}, v{t0}, s[{SWS}:{SWS+3}], s{R['st0']} offen")
    A(f"  buffer_load_dwordx4 {v(R['qf']+4,4)}, v{t0}, s[{SWS}:{SWS+3}], s{R['st0']} offen offset:1024")
    gen_attention(A, R, ST)
    for i in range(16): A(f"  v_mov_b32 v{R['negm']+i}, 0")
    attn_loop(A, R, ST, "p1")
    ST()
    O = R['O']; L = R['L']
    A(f"  v_rcp_f32 v{t0}, v{L}")
    A(f"  s_nop 0")
    for i in range(16):
        A(f"  v_mul_f32 v{O+i}, v{t0}, v{O+i}")
    P = R['P']
    for i in range(8):
        A(f"  v_cvt_pk_bf16_f32 v{P+i}, v{O+2*i}, v{O+2*i+1}")
    A(f"  s_and_b32 s{R['st0']}, s{R['s_wave']}, 1")
    A(f"  s_lshl_b32 s{R['st0']}, s{R['st0']}, 5")
    A(f"  s_lshl_b32 s{R['st1']}, s{R['s_rb']}, 6")
    A(f"  s_add_u32 s{R['st0']}, s{R['st0']}, s{R['st1']}")
    A(f"  v_and_b32 v{t0}, 31, v{lane}")
    A(f"  v_add_u32 v{t0}, s{R['st0']}, v{t0}")
    A(f"  v_lshlrev_b32 v{t0}, 11, v{t0}")
    A(f"  v_lshrrev_b32 v{t1}, 5, v{lane}")
    A(f"  v_lshlrev_b32 v{t1}, 5, v{t1}")
    A(f"  v_add_u32 v{t0}, v{t0}, v{t1}")
    A(f"  s_lshr_b32 s{R['st0']}, s{R['s_wave']}, 1")
    A(f"  s_lshl_b32 s{R['st1']}, s{R['s_hg']}, 2")
    A(f"  s_add_u32 s{R['st0']}, s{R['st0']}, s{R['st1']}")
    A(f"  s_lshl_b32 s{R['st0']}, s{R['st0']}, 6")
    A(f"  s_add_u32 s{R['st0']}, s{R['st0']}, {WS_O}")
    A(f"  buffer_store_dwordx4 {v(P,4)}, v{t0}, s[{SWS}:{SWS+3}], s{R['st0']} offen")
    A(f"  buffer_store_dwordx4 {v(P+4,4)}, v{t0}, s[{SWS}:{SWS+3}], s{R['st0']} offen offset:16")
    ST()
    import conv
    conv.gen_conv(A, R, V, ST)
    ST(); ST(real=True)
    ST.flush(R['s_wave'], SWS, t0, t1)
    A.label(EXIT)
    A("  s_endpgm")
    kernel_desc(A, name, 256, 102, 256)
```

```python
import sys
sys.path.insert(0, "gen")
import common
if "--prof" in sys.argv:
    common.PROF = True
    sys.argv.remove("--prof")
from common import *
import k1
try:
    import k2
except ImportError:
    k2 = None
try:
    import k3
except ImportError:
    k3 = None

HEADER = open("gated_mix__ssm_conv_h3__grouped_kv_mqa__prompt.s.ref").read().split("; Override launch")[0]

def build(which=("k1", "k2", "k3")):
    A = Asm()
    A(HEADER.rstrip("\n"))
    lds = {"k1": 163840, "k2": 163840, "k3": 163840}
    for k in which:
        A(f"; @launch kernel={k}_kernel grid=(256,1,1) block=(512,1,1) lds={lds[k]}")
    A('.amdgcn_target "amdgcn-amd-amdhsa--gfx950"')
    A(".text")
    for k in which:
        {"k1": k1.gen_k1, "k2": k2.gen_k2 if k2 else None, "k3": k3.gen_k3 if k3 else None}[k](A, f"{k}_kernel")
    return A.text()

def build_fused():
    import fused
    A = Asm()
    A(HEADER.rstrip("\n"))
    A("; @launch grid=(256,1,1) block=(512,1,1) lds=163840")
    A('.amdgcn_target "amdgcn-amd-amdhsa--gfx950"')
    A(".text")
    fused.gen_fused(A, "gated_mix__ssm_conv_h3__grouped_kv_mqa__prompt_kernel")
    return A.text()

if __name__ == "__main__":
    if len(sys.argv) > 2 and sys.argv[2] == "fused":
        open(sys.argv[1], "w").write(build_fused())
        sys.exit(0)
    which = sys.argv[2].split(",") if len(sys.argv) > 2 else ["k1", "k2", "k3"]
    open(sys.argv[1], "w").write(build(which))
```

```python
from common import *
import os
OPT = set(os.environ.get('AOPT', '').split(','))
CHUNK = 32768

def ones_setup(A, R):
    lane = R['lane']; t0, t1, t2 = R['t0'], R['t1'], R['t2']; ones = R['ones']
    A(f"  v_and_b32 v{t0}, 3, v{lane}")
    A(f"  v_bfe_u32 v{t1}, v{lane}, 2, 1")
    A(f"  v_bfe_u32 v{t2}, v{lane}, 4, 1")
    A(f"  v_xor_b32 v{t1}, v{t1}, v{t2}")
    A(f"  v_or_b32 v{t0}, v{t0}, v{t1}")
    A(f"  v_cmp_eq_u32 vcc, 0, v{t0}")
    A(f"  v_mov_b32 v{t0}, 0x3f803f80")
    A(f"  v_lshlrev_b32 v{R['dmaoff']}, 4, v{lane}")
    A(f"  v_cndmask_b32 v{ones}, 0, v{t0}, vcc")
    for i in range(1, 4):
        A(f"  v_mov_b32 v{ones+i}, v{ones}")

def attn_pass(A, R, hook_c0=None, hook_c5=None, last_groups=None, ST=None, pre_issued=False, touch_hook=None):
    t0 = R['t0']
    qf = R['qf']; O = R['O']; L = R['L']; negm = R['negm']; S = R['S']; P = R['P']; KF = R['KF']; VF = R['VF']; ones = R['ones']
    SWS = R['srd_ws']; sw = R['s_wave']
    cur = R['rd0']; nxt = R['rd1']; lane16 = R['dmaoff']
    s_c, s_slot, s_goff, s_m0b, s_m0v = 20, 21, 22, 23, 24
    A(f"  s_lshl_b32 s{s_m0b}, s{sw}, 12")
    A(f"  s_add_u32 s{s_goff}, s{s_m0b}, {WS_KVF}")
    Lskip = A.uniq("pre")
    if pre_issued:
        A(f"  s_cmp_eq_u32 s101, 0")
        A(f"  s_cbranch_scc1 {Lskip}")
    for ch in range(2):
        A(f"  s_add_u32 m0, s{s_m0b}, {ch*CHUNK}")
        A(f"  s_nop 0")
        for i in range(4):
            A(f"  buffer_load_dwordx4 v{lane16}, s[{SWS}:{SWS+3}], s{s_goff} offen offset:{i*1024} lds")
        A(f"  s_add_u32 s{s_goff}, s{s_goff}, {CHUNK}")
    A(f"  s_waitcnt vmcnt(0)")
    A(f"  s_sub_u32 s{s_goff}, s{s_goff}, {2*CHUNK}")
    A.label(Lskip)
    A(f"  s_add_u32 s{s_goff}, s{s_goff}, {2*CHUNK}")
    for i in range(16): A(f"  v_mov_b32 v{O+i}, 0")
    for i in range(4): A(f"  v_mov_b32 v{L+i}, 0")
    for i in range(8): A(f"  v_mov_b32 v{P+8+i}, 0")
    for i in range(8): A(f"  v_mov_b32 v{VF+8+i}, 0")
    A(f"  s_mov_b32 s{s_slot}, {2*CHUNK}")
    A(f"  s_mov_b32 s{s_c}, 0")
    A(f"  v_mov_b32 v{cur}, v{lane16}")
    A(f"  v_add_u32 v{nxt}, {CHUNK}, v{lane16}")
    A(f"  s_waitcnt vmcnt({(pre_issued if pre_issued is not True else 6) if pre_issued else 0})")
    if ST: ST()
    A(f"  s_barrier")
    if ST: ST()
    def rk(j2):
        b = KF + 8 * (j2 % 2)
        r, jj = (cur, j2) if j2 < 8 else (nxt, j2 - 8)
        return [f"  ds_read_b128 {v(b+4*f,4)}, v{r} offset:{jj*4096 + f*1024}" for f in range(2)]
    def rv(j):
        b = VF + 8 * (j % 2)
        return [f"  ds_read_b128 {v(b+4*f,4)}, v{cur} offset:{j*4096 + (2+f)*1024}" for f in range(2)]
    def qk(par):
        sb = S + 16 * par; kb = KF + 8 * par
        return [f"  v_mfma_f32_32x32x16_bf16 {v(sb,16)}, {v(kb,4)}, {v(qf,4)}, {v(negm,16)}",
                f"  v_mfma_f32_32x32x16_bf16 {v(sb,16)}, {v(kb+4,4)}, {v(qf+4,4)}, {v(sb,16)}"]
    def pv(par):
        pb = P + 8 * par; vb = VF + 8 * par
        return ([f"  v_mfma_f32_32x32x16_bf16 {v(O,16)}, {v(vb,4)}, {v(pb,4)}, {v(O,16)}",
                 f"  v_mfma_f32_32x32x16_bf16 {v(O,16)}, {v(vb+4,4)}, {v(pb+4,4)}, {v(O,16)}"],
                [f"  v_mfma_f32_16x16x32_bf16 {v(L,4)}, {v(ones,4)}, {v(pb,4)}, {v(L,4)}",
                 f"  v_mfma_f32_16x16x32_bf16 {v(L,4)}, {v(ones,4)}, {v(pb+4,4)}, {v(L,4)}"])
    for l in rk(0) + rk(1): A(l)
    A(f"  s_waitcnt lgkmcnt(2)")
    for l in qk(0): A(l)
    A.nop(14)
    def tile(j, last, extra):
        par = j % 2
        sb = S + 16 * par; pb = P + 8 * par
        q = qk(1 - par); pvs, sms = pv(1 - par)
        e = [f"  v_exp_f32 v{sb+i}, v{sb+i}" for i in range(16)]
        c = [f"  v_cvt_pk_bf16_f32 v{pb+i}, v{sb+2*i}, v{sb+2*i+1}" for i in range(8)]
        k_rd = rk(j + 2) if not (last and j >= 6) else []
        v_rd = rv(j)
        rds = k_rd + v_rd
        if last and j == 7: q = [None, None]
        M = [q[0], pvs[0], q[1], sms[0], pvs[1], sms[1]]
        gaps = [[e[0], e[1], e[2]], [e[3], e[4], e[5]], [e[6], e[7], c[0], c[1]], [e[8], e[9], c[2]],
                [e[10], e[11], e[12], c[3]], [e[13], e[14], e[15], c[4], c[5], c[6], c[7]]]
        A(f"  s_waitcnt lgkmcnt(0)")
        for i in range(6):
            if M[i]: A(M[i])
            if i < len(rds): A(rds[i])
            if i < len(extra):
                for l in extra[i]: A(l)
            for l in gaps[i]: A(l)
    LOOP = A.uniq("attn")
    def chunk_body(dma, touches):
        for j in range(8):
            A(f"  ; ---- tile {j}")
            extra = []
            if j == 6:
                if hook_c5: hook_c5(s_c) if dma else None
                A(f"  s_waitcnt vmcnt({2 if (touch_hook and touches) else 0})")
                A(f"  s_barrier")
                if dma:
                    A(f"  s_add_u32 m0, s{s_m0b}, s{s_slot}")
                    if hook_c0: hook_c0(s_c)
            if j in (6, 7) and dma:
                def piece(i):
                    return [f"  buffer_load_dwordx4 v{lane16}, s[{SWS}:{SWS+3}], s{s_goff} offen offset:{i*1024} lds"]
                b_ = 2 * (j - 6)
                extra = [[], [], [], [], piece(b_), piece(b_ + 1)]
            if j == 1 and touch_hook and touches:
                extra = [[], [], [], [], touch_hook(s_c), []]
            tile(j, False, extra)
            if j == 7 and dma:
                A(f"  s_add_u32 s{s_goff}, s{s_goff}, {CHUNK}")
                A(f"  s_add_u32 s{s_slot}, s{s_slot}, {CHUNK}")
                A(f"  s_cmp_eq_u32 s{s_slot}, {3*CHUNK}")
                A(f"  s_cselect_b32 s{s_slot}, 0, s{s_slot}")
        A(f"  v_mov_b32 v{cur}, v{nxt}")
        A(f"  v_add_u32 v{nxt}, {CHUNK}, v{nxt}")
        A(f"  v_cmp_le_u32 vcc, {3*CHUNK}, v{nxt}")
        A(f"  v_subrev_u32 v{t0}, {3*CHUNK}, v{nxt}")
        A(f"  s_add_u32 s{s_c}, s{s_c}, 1")
        A(f"  v_cndmask_b32 v{nxt}, v{nxt}, v{t0}, vcc")
    A(f".p2align 6")
    A.label(LOOP)
    chunk_body(True, True)
    A(f"  s_cmp_lt_u32 s{s_c}, 6")
    A(f"  s_cbranch_scc1 {LOOP}")
    chunk_body(False, False)
    if ST: ST()
    A(f"  s_waitcnt lgkmcnt(0)")
    A(f"  s_barrier")
    groups = list(last_groups or [])
    per = (len(groups) + 7) // 8
    for j in range(8):
        A(f"  ; ---- last tile {j}")
        g = groups[j*per:(j+1)*per]
        extra = [[] for _ in range(6)]
        slots = [4, 5, 3, 2, 1, 0]
        for i, gg in enumerate(g): extra[slots[i % 6]] = extra[slots[i % 6]] + gg
        tile(j, True, extra)
    pvs, sms = pv(1)
    A(f"  s_waitcnt lgkmcnt(0)")
    A(pvs[0]); A(sms[0]); A(pvs[1]); A(sms[1])
    A.nop(16)

def max_pass(A, R):
    t0, t1 = R['t0'], R['t1']
    qf = R['qf']; negm = R['negm']; S = R['S']; KF = R['KF']
    SWS = R['srd_ws']; sw = R['s_wave']; lane16 = R['dmaoff']
    s_c, s_goff, s_m0b = 20, 22, 23
    m = R['P']
    A(f"  v_mov_b32 v{m}, 0xff800000")
    A(f"  s_lshl_b32 s{s_m0b}, s{sw}, 12")
    A(f"  s_add_u32 s{s_goff}, s{s_m0b}, {WS_KVF}")
    A(f"  s_mov_b32 s{s_c}, 0")
    LOOP = A.uniq("maxp")
    A.label(LOOP)
    A(f"  s_barrier")
    A(f"  s_mov_b32 m0, s{s_m0b}")
    A(f"  s_nop 0")
    for i in range(2):
        A(f"  buffer_load_dwordx4 v{lane16}, s[{SWS}:{SWS+3}], s{s_goff} offen offset:{i*1024} lds")
    A(f"  s_waitcnt vmcnt(0)")
    A(f"  s_barrier")
    for j in range(8):
        for f in range(2):
            A(f"  ds_read_b128 {v(KF+4*f,4)}, v{lane16} offset:{j*4096 + f*1024}")
        A(f"  s_waitcnt lgkmcnt(0)")
        A(f"  v_mfma_f32_32x32x16_bf16 {v(S,16)}, {v(KF,4)}, {v(qf,4)}, 0")
        A(f"  v_mfma_f32_32x32x16_bf16 {v(S,16)}, {v(KF+4,4)}, {v(qf+4,4)}, {v(S,16)}")
        A.nop(16)
        for i in range(8):
            A(f"  v_max3_f32 v{m}, v{S+2*i}, v{S+2*i+1}, v{m}")
    A(f"  s_add_u32 s{s_goff}, s{s_goff}, {CHUNK}")
    A(f"  s_add_u32 s{s_c}, s{s_c}, 1")
    A(f"  s_cmp_lt_u32 s{s_c}, 8")
    A(f"  s_cbranch_scc1 {LOOP}")
    A(f"  v_mov_b32 v{m+1}, v{m}")
    A(f"  s_nop 1")
    A(f"  v_permlane32_swap_b32 v{m}, v{m+1}")
    A(f"  s_nop 1")
    A(f"  v_max_f32 v{m}, v{m}, v{m+1}")
    for i in range(16):
        A(f"  v_sub_f32 v{negm+i}, 0, v{m}")
    A(f"  s_barrier")
```

```python
from dsl import *

MB = 1 << 20
WS_QF = 0
WS_KVT = 4 * MB
WS_O = 8 * MB
WS_ZT = 12 * MB
WS_KVF = 16 * MB
WS_G = 16 * MB + 256 * 1024
WS_SIZE = 0x10000000

KA = dict(q=0, k=8, v=16, shift=24, ssmk=32, ssmD=40, bx=48, wq=56, wk=64, wv=72, wo=80, gate=88, out=96, dbg=104, ws=112)
PTR_BASE = 64
def ptr(name):
    return PTR_BASE + KA[name] // 4

QSCALE = 0.17677669529663687 * 1.4426950408889634

def f32bits(x):
    import struct
    return struct.unpack("<I", struct.pack("<f", x))[0]

def prologue(A, nwg, exit_label):
    A(f"  s_cmp_ge_u32 s2, {nwg}")
    A(f"  s_cbranch_scc1 {exit_label}")
    A(f"  s_load_dwordx16 s[64:79], s[0:1], 0")
    A(f"  s_load_dwordx8 s[80:87], s[0:1], 64")
    A(f"  s_load_dwordx4 s[88:91], s[0:1], 96")
    A(f"  s_load_dwordx2 s[92:93], s[0:1], 112")

def srd(A, dst, name, size, off=0):
    p = ptr(name)
    if off == 0:
        A(f"  s_mov_b32 s{dst}, s{p}")
        A(f"  s_mov_b32 s{dst+1}, s{p+1}")
    else:
        A(f"  s_add_u32 s{dst}, s{p}, {off}")
        A(f"  s_addc_u32 s{dst+1}, s{p+1}, 0")
    A(f"  s_mov_b32 s{dst+2}, {size}")
    A(f"  s_mov_b32 s{dst+3}, 0x20000")

import os
MAPPING = int(os.environ.get("MAPPING", "0"))
def wg_map(A, s_rb, s_hg, tmp):
    if MAPPING == 0:
        A(f"  s_and_b32 s{s_rb}, s2, 7")
        A(f"  s_lshl_b32 s{s_rb}, s{s_rb}, 2")
        A(f"  s_lshr_b32 s{tmp}, s2, 3")
        A(f"  s_and_b32 s{tmp}, s{tmp}, 3")
        A(f"  s_add_u32 s{s_rb}, s{s_rb}, s{tmp}")
        A(f"  s_lshr_b32 s{s_hg}, s2, 5")
    else:
        A(f"  s_bfe_u32 s{s_rb}, s2, 0x20001")
        A(f"  s_lshl_b32 s{s_rb}, s{s_rb}, 3")
        A(f"  s_bfe_u32 s{tmp}, s2, 0x30003")
        A(f"  s_add_u32 s{s_rb}, s{s_rb}, s{tmp}")
        A(f"  s_and_b32 s{s_hg}, s2, 1")
        A(f"  s_lshl_b32 s{s_hg}, s{s_hg}, 2")
        A(f"  s_lshr_b32 s{tmp}, s2, 6")
        A(f"  s_add_u32 s{s_hg}, s{s_hg}, s{tmp}")

def wave_id(A, s_wave, v_lane, vtmp):
    A(f"  v_and_b32 v{v_lane}, 63, v0")
    A(f"  v_lshrrev_b32 v{vtmp}, 6, v0")
    A(f"  s_nop 1")
    A(f"  v_readfirstlane_b32 s{s_wave}, v{vtmp}")
    A(f"  s_nop 4")

def kernel_header(A, name):
    A(f".globl {name}")
    A(f".p2align 8")
    A(f".type {name},@function")
    A(f"{name}:")

def kernel_desc(A, name, nv, ns, accum):
    A(f'.section .rodata,"a"')
    A(f".p2align 6")
    A(f".amdhsa_kernel {name}")
    A(f"  .amdhsa_next_free_vgpr {nv}")
    A(f"  .amdhsa_next_free_sgpr {ns}")
    A(f"  .amdhsa_accum_offset {accum}")
    A(f"  .amdhsa_group_segment_fixed_size 0")
    A(f"  .amdhsa_kernarg_size 120")
    A(f"  .amdhsa_user_sgpr_count 2")
    A(f"  .amdhsa_user_sgpr_kernarg_segment_ptr 1")
    A(f"  .amdhsa_system_sgpr_workgroup_id_x 1")
    A(f".end_amdhsa_kernel")
    A(f".text")

PROF = False
WS_PROF = 24 * MB
class Stamps:
    def __init__(self, A, kidx):
        self.A = A; self.n = 0; self.kidx = kidx
    def __call__(self, real=False):
        if not PROF or getattr(self, 'off', False): return
        r = 40 + self.n
        assert r <= 59
        self.A(f"  s_mem{'real' if real else ''}time s[38:39]")
        self.A(f"  s_waitcnt lgkmcnt(0)")
        self.A(f"  s_mov_b32 s{r}, s38")
        self.n += 1
    def flush(self, s_wave, srd_ws, vt0, vt1):
        if not PROF: return
        A = self.A
        L = A.uniq("prof")
        A(f"  s_waitcnt lgkmcnt(0) vmcnt(0)")
        A(f"  s_lshl_b32 s3, s2, 3")
        A(f"  s_add_u32 s3, s3, s{s_wave}")
        A(f"  s_lshl_b32 s3, s3, 7")
        A(f"  s_add_u32 s3, s3, {WS_PROF + self.kidx * 0x80000}")
        A(f"  v_mov_b32 v{vt0}, 0")
        for i in range(self.n):
            A(f"  v_mov_b32 v{vt1}, s{40+i}")
            A(f"  buffer_store_dword v{vt1}, v{vt0}, s[{srd_ws}:{srd_ws+3}], s3 offen offset:{4*i}")
        A(f"  s_waitcnt vmcnt(0)")
```

```python
from common import *

CH_STRIDE = 25920
ACOPY = 4160
BOFF = 16640
BCOPY = 4640

def gen_conv(A, R, V, ST, chan_sreg=None, store_sc='', nt=''):
    lane = R['lane']; t0, t1, t2, t3 = R['t0'], R['t1'], R['t2'], R['t3']
    sw = R['s_wave']; st0, st1 = R['st0'], R['st1']; SWS = R['srd_ws']
    SF, SX = 8, 12
    s_ch, s_hw, s_d, s_lb = 16, 17, 18, 19
    V.reset(R.get('conv_free', R['qf']))
    A(f"  s_lshr_b32 s{s_ch}, s{sw}, 1")
    A(f"  s_and_b32 s{s_hw}, s{sw}, 1")
    A(f"  s_lshl_b32 s{s_d}, s{R.get('s_lid', 2)}, 2")
    A(f"  s_add_u32 s{s_d}, s{s_d}, s{s_ch}")
    A(f"  s_lshl_b32 s{st0}, s{s_d}, 12")
    A(f"  s_add_u32 s{SF}, s{ptr('ssmk')}, s{st0}")
    A(f"  s_addc_u32 s{SF+1}, s{ptr('ssmk')+1}, 0")
    A(f"  s_mov_b32 s{SF+2}, 4096")
    A(f"  s_mov_b32 s{SF+3}, 0x20000")
    A(f"  s_add_u32 s{st0}, s{st0}, {WS_KVT}")
    A(f"  s_add_u32 s{SX}, s{ptr('ws')}, s{st0}")
    A(f"  s_addc_u32 s{SX+1}, s{ptr('ws')+1}, 0")
    A(f"  s_mov_b32 s{SX+2}, 4096")
    A(f"  s_mov_b32 s{SX+3}, 0x20000")
    A(f"  s_mul_i32 s{s_lb}, s{s_ch}, {CH_STRIDE}")
    A(f"  s_lshl_b32 s{st0}, s{s_d}, 1")
    A(f"  s_and_b32 s{st0}, s{st0}, 0xfffffffc")
    A(f"  s_load_dword s20, s[{ptr('ssmD')}:{ptr('ssmD')+1}], s{st0}")
    q0 = V()
    A(f"  s_lshl_b32 s{st0}, s{s_hw}, 6")
    A(f"  v_add_u32 v{q0}, s{st0}, v{lane}")
    NP = 3
    fa = V(8 * NP, 4)
    xb = V(4 * NP, 4); xe = V(NP)
    for p in range(NP):
        A(f"  v_add_u32 v{t0}, {(128*p - 4) & 0xffffffff}, v{q0}")
        A(f"  v_lshlrev_b32 v{t0}, 4, v{t0}")
        A(f"  v_add_u32 v{t1}, 16, v{t0}")
        A(f"  buffer_load_dwordx4 {v(fa+8*p,4)}, v{t0}, s[{SF}:{SF+3}], 0 offen{nt}")
        A(f"  buffer_load_dwordx4 {v(fa+8*p+4,4)}, v{t1}, s[{SF}:{SF+3}], 0 offen{nt}")
        A(f"  v_add_u32 v{t0}, {128*p}, v{q0}")
        A(f"  v_lshlrev_b32 v{t0}, 4, v{t0}")
        A(f"  buffer_load_dwordx4 {v(xb+4*p,4)}, v{t0}, s[{SX}:{SX+3}], 0 offen")
        A(f"  buffer_load_dword v{xe+p}, v{t0}, s[{SX}:{SX+3}], 0 offen offset:16")
    A(f"  s_barrier")
    tmp = V(4, 4)
    for p in range(NP):
        A(f"  s_waitcnt vmcnt({4*(NP-1-p)})")
        A(f"  v_add_u32 v{t0}, {128*p}, v{q0}")
        A(f"  v_lshlrev_b32 v{t1}, 4, v{t0}")
        A(f"  v_add_u32 v{t1}, s{s_lb}, v{t1}")
        if p == NP - 1:
            A(f"  v_cmp_gt_u32 vcc, 260, v{t0}")
            A(f"  s_and_saveexec_b64 s[22:23], vcc")
            Lskip = A.uniq("cv")
            A(f"  s_cbranch_execz {Lskip}")
        D = fa + 8*p
        A(f"  ds_write_b128 v{t1}, {v(D,4)}")
        for j in range(4): A(f"  v_mov_b32 v{tmp+j}, v{D+1+j}")
        A(f"  ds_write_b128 v{t1}, {v(tmp,4)} offset:{ACOPY}")
        A(f"  ds_write_b128 v{t1}, {v(D+2,4)} offset:{2*ACOPY}")
        A(f"  s_nop 1")
        for j in range(4): A(f"  v_mov_b32 v{tmp+j}, v{D+3+j}")
        A(f"  ds_write_b128 v{t1}, {v(tmp,4)} offset:{3*ACOPY}")
        if p == NP - 1:
            A.label(Lskip)
            A(f"  s_mov_b64 exec, s[22:23]")
            A(f"  v_cmp_gt_u32 vcc, 284, v{t0}")
            A(f"  s_and_saveexec_b64 s[22:23], vcc")
            Lskip2 = A.uniq("cv")
            A(f"  s_cbranch_execz {Lskip2}")
        X = xb + 4*p
        A(f"  ds_write_b128 v{t1}, {v(X,4)} offset:{BOFF + BCOPY}")
        A(f"  s_nop 1")
        A(f"  v_alignbit_b32 v{tmp}, v{X+1}, v{X}, 16")
        A(f"  v_alignbit_b32 v{tmp+1}, v{X+2}, v{X+1}, 16")
        A(f"  v_alignbit_b32 v{tmp+2}, v{X+3}, v{X+2}, 16")
        A(f"  v_alignbit_b32 v{tmp+3}, v{xe+p}, v{X+3}, 16")
        A(f"  ds_write_b128 v{t1}, {v(tmp,4)} offset:{BOFF}")
        A(f"  s_nop 1")
        if p == NP - 1:
            A.label(Lskip2)
            A(f"  s_mov_b64 exec, s[22:23]")
    V.reset(q0 + 1)
    aaddr = V(); baddr = V()
    A(f"  v_and_b32 v{t0}, 3, v{lane}")
    A(f"  v_add_u32 v{t0}, 1, v{t0}")
    A(f"  v_lshrrev_b32 v{t1}, 2, v{t0}")
    A(f"  v_and_b32 v{t0}, 3, v{t0}")
    A(f"  v_mul_u32_u24 v{t0}, {ACOPY}, v{t0}")
    A(f"  v_bfe_u32 v{t2}, v{lane}, 2, 2")
    A(f"  v_add_u32 v{t1}, v{t1}, v{t2}")
    A(f"  v_lshrrev_b32 v{t2}, 4, v{lane}")
    A(f"  v_add_u32 v{t1}, v{t1}, v{t2}")
    A(f"  v_lshlrev_b32 v{t1}, 4, v{t1}")
    A(f"  v_add_u32 v{t0}, v{t0}, v{t1}")
    A(f"  s_lshl_b32 s{st0}, s{s_hw}, 8")
    A(f"  s_add_u32 s{st0}, s{st0}, s{s_lb}")
    A(f"  v_add_u32 v{aaddr}, s{st0}, v{t0}")
    A(f"  v_and_b32 v{t0}, 1, v{lane}")
    A(f"  v_mul_u32_u24 v{t0}, {BCOPY}, v{t0}")
    A(f"  v_bfe_u32 v{t1}, v{lane}, 1, 3")
    A(f"  v_lshlrev_b32 v{t1}, 6, v{t1}")
    A(f"  v_sub_u32 v{t0}, v{t0}, v{t1}")
    A(f"  v_lshlrev_b32 v{t2}, 4, v{t2}")
    A(f"  v_add_u32 v{t0}, v{t0}, v{t2}")
    A(f"  s_add_u32 s{st0}, s{st0}, {BOFF + 448}")
    A(f"  v_add_u32 v{baddr}, s{st0}, v{t0}")
    acc = V(32, 4); AF = V(32, 4); BF = V(32, 4); AD = V(4, 4)
    for i in range(32): A(f"  v_mov_b32 v{acc+i}, 0")
    A(f"  s_waitcnt lgkmcnt(0)")
    A(f"  s_and_b32 s{st0}, s{s_d}, 1")
    A(f"  s_lshl_b32 s{st0}, s{st0}, 4")
    A(f"  s_lshr_b32 s20, s20, s{st0}")
    A(f"  s_and_b32 s20, s20, 0xffff")
    A(f"  v_and_b32 v{t0}, 3, v{lane}")
    A(f"  v_lshlrev_b32 v{t0}, 1, v{t0}")
    A(f"  v_bfe_u32 v{t1}, v{lane}, 2, 2")
    A(f"  v_lshlrev_b32 v{t1}, 3, v{t1}")
    A(f"  v_add_u32 v{t0}, v{t0}, v{t1}")
    A(f"  v_lshrrev_b32 v{t1}, 4, v{lane}")
    A(f"  v_lshlrev_b32 v{t1}, 3, v{t1}")
    A(f"  v_add_u32 v{t0}, v{t0}, v{t1}")
    A(f"  v_sub_u32 v{t0}, 30, v{t0}")
    A(f"  v_mov_b32 v{t1}, s20")
    for i in range(4):
        A(f"  v_cmp_eq_u32 vcc, {2*i}, v{t0}")
        A(f"  s_nop 1")
        A(f"  v_cndmask_b32 v{AD+i}, 0, v{t1}, vcc")
    A(f"  s_barrier")
    ST()
    for kp in range(4):
        for b in range(8):
            A(f"  ds_read_b128 {v(BF+4*b,4)}, v{baddr} offset:{512*(7-b) + 64*kp}")
        for a_ in range(7):
            A(f"  ds_read_b128 {v(AF+4*a_,4)}, v{aaddr} offset:{512*a_ + 64*kp}")
        for a_ in range(8):
            A(f"  s_waitcnt lgkmcnt({6 if a_ <= 1 else 7 - a_})")
            if a_ == 0:
                A(f"  ds_read_b128 {v(AF+28,4)}, v{aaddr} offset:{512*7 + 64*kp}")
            for b in range(8 - a_):
                i = a_ + b
                A(f"  v_mfma_f32_16x16x32_bf16 {v(acc+4*i,4)}, {v(AF+4*a_,4)}, {v(BF+4*b,4)}, {v(acc+4*i,4)}")
            if a_ == 0 and kp == 0:
                Lno = A.uniq("cvd")
                A(f"  s_cmp_lg_u32 s{s_hw}, 0")
                A(f"  s_cbranch_scc1 {Lno}")
                for b in range(8):
                    A(f"  v_mfma_f32_16x16x32_bf16 {v(acc+4*b,4)}, {v(AD,4)}, {v(BF+4*b,4)}, {v(acc+4*b,4)}")
                A.label(Lno)
    A.nop(10)
    ST()
    A(f"  s_barrier")
    A(f"  v_lshlrev_b32 v{t0}, 4, v{lane}")
    A(f"  s_lshl_b32 s{st0}, s{sw}, 12")
    A(f"  v_add_u32 v{t1}, s{st0}, v{t0}")
    Lh1 = A.uniq("cvh"); Lj = A.uniq("cvj")
    A(f"  s_cmp_lg_u32 s{s_hw}, 0")
    A(f"  s_cbranch_scc1 {Lh1}")
    for i in range(4): A(f"  ds_write_b128 v{t1}, {v(acc+16+4*i,4)} offset:{1024*i}")
    A(f"  s_branch {Lj}")
    A.label(Lh1)
    for i in range(4): A(f"  ds_write_b128 v{t1}, {v(acc+4*i,4)} offset:{1024*i}")
    for i in range(16): A(f"  v_mov_b32 v{acc+i}, v{acc+16+i}")
    A.label(Lj)
    A(f"  s_waitcnt lgkmcnt(0)")
    A(f"  s_barrier")
    A(f"  s_xor_b32 s{st0}, s{sw}, 1")
    A(f"  s_lshl_b32 s{st0}, s{st0}, 12")
    A(f"  v_add_u32 v{t1}, s{st0}, v{t0}")
    o = AF
    for i in range(4): A(f"  ds_read_b128 {v(o+4*i,4)}, v{t1} offset:{1024*i}")
    A(f"  s_waitcnt lgkmcnt(0)")
    for i in range(16): A(f"  v_add_f32 v{acc+i}, v{acc+i}, v{o+i}")
    A(f"  v_and_b32 v{t0}, 1, v{lane}")
    A(f"  v_cmp_eq_u32 vcc, 1, v{t0}")
    A(f"  v_lshlrev_b32 v{t0}, 3, v{t0}")
    A(f"  v_bfe_u32 v{t1}, v{lane}, 1, 3")
    A(f"  v_lshlrev_b32 v{t1}, 6, v{t1}")
    A(f"  v_add_u32 v{t0}, v{t0}, v{t1}")
    A(f"  v_lshrrev_b32 v{t1}, 4, v{lane}")
    A(f"  v_lshlrev_b32 v{t1}, 4, v{t1}")
    A(f"  v_add_u32 v{t0}, v{t0}, v{t1}")
    A(f"  s_lshl_b32 s{st0}, s{s_d}, 12")
    A(f"  s_lshl_b32 s{st1}, s{s_hw}, 11")
    A(f"  s_add_u32 s{st0}, s{st0}, s{st1}")
    A(f"  s_add_u32 s{st0}, s{st0}, {WS_ZT}")
    sa, sb, xa, xb2, p0, p1 = BF, BF+1, BF+2, BF+3, BF+4, BF+5
    for i in range(4):
        r0, r1, r2, r3 = acc+4*i, acc+4*i+1, acc+4*i+2, acc+4*i+3
        A(f"  v_cndmask_b32 v{sa}, v{r2}, v{r0}, vcc")
        A(f"  v_cndmask_b32 v{sb}, v{r3}, v{r1}, vcc")
        A(f"  s_nop 1")
        A(f"  v_mov_b32_dpp v{xa}, v{sa} quad_perm:[1,0,3,2] row_mask:0xf bank_mask:0xf")
        A(f"  v_mov_b32_dpp v{xb2}, v{sb} quad_perm:[1,0,3,2] row_mask:0xf bank_mask:0xf")
        A(f"  v_cndmask_b32 v{sa}, v{r0}, v{xa}, vcc")
        A(f"  v_cndmask_b32 v{sb}, v{xa}, v{r2}, vcc")
        A(f"  v_cvt_pk_bf16_f32 v{p0}, v{sa}, v{sb}")
        A(f"  v_cndmask_b32 v{sa}, v{r1}, v{xb2}, vcc")
        A(f"  v_cndmask_b32 v{sb}, v{xb2}, v{r3}, vcc")
        A(f"  v_cvt_pk_bf16_f32 v{p1}, v{sa}, v{sb}")
        A(f"  buffer_store_dwordx2 {v(p0,2)}, v{t0}, s[{SWS}:{SWS+3}], s{st0} offen offset:{512*i}{store_sc}")
        A(f"  s_nop 1")
```

```python
from common import *
import os
MIDKP = int(os.environ.get('MIDKP', '2'))
ACOPY = 4160
BOFF = 16640
BCOPY = 4640
CH_BASE = [0, 65536, 91456, 117376]
SF, SX = 8, 12
s_ch, s_hw, s_d, s_lb, s_D = 16, 17, 18, 19, 94

def conv_setup(A, R, V):
    lane = R['lane']; t0, t1, t2 = R['t0'], R['t1'], R['t2']
    sw = R['s_wave']; st0 = R['st0']
    A(f"  s_lshr_b32 s{s_ch}, s{sw}, 1")
    A(f"  s_and_b32 s{s_hw}, s{sw}, 1")
    A(f"  s_lshl_b32 s{s_d}, s{R['s_lid']}, 2")
    A(f"  s_add_u32 s{s_d}, s{s_d}, s{s_ch}")
    A(f"  s_lshl_b32 s{st0}, s{s_d}, 12")
    A(f"  s_add_u32 s{SF}, s{ptr('ssmk')}, s{st0}")
    A(f"  s_addc_u32 s{SF+1}, s{ptr('ssmk')+1}, 0")
    A(f"  s_mov_b32 s{SF+2}, 4096")
    A(f"  s_mov_b32 s{SF+3}, 0x20000")
    A(f"  s_add_u32 s{st0}, s{st0}, {WS_KVT}")
    A(f"  s_add_u32 s{SX}, s{ptr('ws')}, s{st0}")
    A(f"  s_addc_u32 s{SX+1}, s{ptr('ws')+1}, 0")
    A(f"  s_mov_b32 s{SX+2}, 4096")
    A(f"  s_mov_b32 s{SX+3}, 0x20000")
    A(f"  s_mul_i32 s{s_lb}, s{s_ch}, 25920")
    A(f"  s_add_u32 s{s_lb}, s{s_lb}, {65536 - 25920}")
    A(f"  s_cmp_eq_u32 s{s_ch}, 0")
    A(f"  s_cselect_b32 s{s_lb}, 0, s{s_lb}")
    C = {}
    C['vneg'] = V(); C['q16'] = V(); C['xb'] = V(12, 4); C['xe'] = V(3); C['pk'] = V(); C['pka'] = V()
    A(f"  v_lshlrev_b32 v{t0}, 4, v{lane}")
    A(f"  v_add_u32 v{C['vneg']}, -64, v{t0}")
    A(f"  s_lshl_b32 s{st0}, s{s_hw}, 10")
    A(f"  v_add_u32 v{C['q16']}, s{st0}, v{t0}")
    A(f"  v_cmp_le_u32 vcc, 1, v{lane}")
    A(f"  v_mov_b32 v{t0}, 1")
    A(f"  v_mov_b32 v{t1}, 0")
    A(f"  v_addc_co_u32 v{t0}, vcc, 0, v{t0}, vcc")
    A(f"  v_cmp_le_u32 vcc, 1, v{lane}")
    A(f"  s_nop 1")
    A(f"  v_cndmask_b32 v{t1}, 0, 1, vcc")
    A(f"  v_cmp_le_u32 vcc, 3, v{lane}")
    A(f"  s_nop 1")
    A(f"  v_addc_co_u32 v{t0}, vcc, 0, v{t0}, vcc")
    A(f"  v_cmp_le_u32 vcc, 3, v{lane}")
    A(f"  s_nop 1")
    A(f"  v_cndmask_b32 v{t1}, v{t1}, 3, vcc")
    A(f"  v_sub_u32 v{t1}, v{lane}, v{t1}")
    A(f"  v_sub_u32 v{t2}, v{t1}, v{t0}")
    A(f"  v_add_u32 v{t2}, 4, v{t2}")
    A(f"  v_lshlrev_b32 v{t2}, 2, v{t2}")
    A(f"  v_mul_u32_u24 v{C['pka']}, {ACOPY}, v{t0}")
    A(f"  v_add_u32 v{C['pka']}, v{C['pka']}, v{t2}")
    A(f"  v_add_u32 v{C['pka']}, 48, v{C['pka']}")
    A(f"  v_add_u32 v{C['pka']}, s{s_lb}, v{C['pka']}")
    A(f"  v_lshlrev_b32 v{C['pk']}, 2, v{t1}")
    A(f"  v_lshrrev_b32 v{t0}, 1, v{t0}")
    A(f"  v_cmp_eq_u32 vcc, s{s_hw}, v{t0}")
    A(f"  s_nop 1")
    A(f"  s_and_b64 s[26:27], vcc, 0x3f")
    return C

def conv_prefetch_groups(R, C, nt=""):
    st0 = 38
    lane16 = R['dmaoff']
    G = []
    for p in range(3):
        G.append(([f"  s_movk_i32 s{st0}, {2048*p}",
                   f"  buffer_load_dwordx4 {v(C['xb']+4*p,4)}, v{C['q16']}, s[{SX}:{SX+3}], s{st0} offen",
                   f"  buffer_load_dword v{C['xe']+p}, v{C['q16']}, s[{SX}:{SX+3}], s{st0} offen offset:16"], ["cB", "cB"]))
    G.append(([f"  buffer_load_dword v{C['pk']}, v{C['pk']}, s[{SF}:{SF+3}], 0 offen"], ["cP"]))
    first = [f"  s_mul_i32 s39, s{s_hw}, {2*ACOPY}", f"  s_add_u32 s39, s39, s{s_lb}", f"  s_lshl_b32 s61, s{s_hw}, 3"]
    for cc in range(2):
        for j in range(5):
            L = list(first); first = []
            L.append(f"  s_add_u32 m0, s39, {cc*ACOPY + 1024*j}")
            if j == 0:
                L.append(f"  s_add_u32 s{st0}, s61, {4*cc}")
                L.append(f"  buffer_load_dwordx4 v{C['vneg']}, s[{SF}:{SF+3}], s{st0} offen{nt} lds")
            else:
                L.append(f"  s_add_u32 s{st0}, s61, {1024*j + 4*cc - 64}")
                if j == 4: L.append(f"  s_mov_b64 exec, 0xf")
                L.append(f"  buffer_load_dwordx4 v{lane16}, s[{SF}:{SF+3}], s{st0} offen{nt} lds")
                if j == 4: L.append(f"  s_mov_b64 exec, -1")
            G.append((L, ["cA"]))
    return G

def conv_build(A, R, V, C, vm):
    t0, t1 = R['t0'], R['t1']
    tmp = V(4, 4)
    vm.wait(A, ["cB", "cP", "cA"])
    A(f"  v_add_u32 v{t1}, s{s_lb}, v{C['q16']}")
    for p in range(3):
        X = C['xb'] + 4*p
        if p == 2:
            A(f"  v_cmp_gt_u32 vcc, {28*16}, v{C['q16']}")
            A(f"  s_and_saveexec_b64 s[62:63], vcc")
            Ls = A.uniq("cvb")
            A(f"  s_cbranch_execz {Ls}")
        A(f"  ds_write_b128 v{t1}, {v(X,4)} offset:{BOFF + BCOPY + 2048*p}")
        A(f"  v_alignbit_b32 v{tmp}, v{X+1}, v{X}, 16")
        A(f"  v_alignbit_b32 v{tmp+1}, v{X+2}, v{X+1}, 16")
        A(f"  v_alignbit_b32 v{tmp+2}, v{X+3}, v{X+2}, 16")
        A(f"  v_alignbit_b32 v{tmp+3}, v{C['xe']+p}, v{X+3}, 16")
        A(f"  ds_write_b128 v{t1}, {v(tmp,4)} offset:{BOFF + 2048*p}")
        A(f"  s_nop 1")
        if p == 2:
            A.label(Ls)
            A(f"  s_mov_b64 exec, s[62:63]")
    Lp = A.uniq("cvp")
    A(f"  s_cmp_eq_u64 s[26:27], 0")
    A(f"  s_cbranch_scc1 {Lp}")
    A(f"  s_mov_b64 exec, s[26:27]")
    A(f"  ds_write_b32 v{C['pka']}, v{C['pk']}")
    A(f"  s_mov_b64 exec, -1")
    A.label(Lp)

def conv_main(A, R, V, mid_hook=None, start_hook=None):
    lane = R['lane']; t0, t1, t2 = R['t0'], R['t1'], R['t2']; st0 = R['st0']
    aaddr = V(); baddr = V()
    A(f"  v_and_b32 v{t0}, 3, v{lane}")
    A(f"  v_add_u32 v{t0}, 1, v{t0}")
    A(f"  v_lshrrev_b32 v{t1}, 2, v{t0}")
    A(f"  v_and_b32 v{t0}, 3, v{t0}")
    A(f"  v_mul_u32_u24 v{t0}, {ACOPY}, v{t0}")
    A(f"  v_bfe_u32 v{t2}, v{lane}, 2, 2")
    A(f"  v_add_u32 v{t1}, v{t1}, v{t2}")
    A(f"  v_lshrrev_b32 v{t2}, 4, v{lane}")
    A(f"  v_add_u32 v{t1}, v{t1}, v{t2}")
    A(f"  v_lshl_add_u32 v{t0}, v{t1}, 4, v{t0}")
    A(f"  s_lshl_b32 s{st0}, s{s_hw}, 8")
    A(f"  s_add_u32 s{st0}, s{st0}, s{s_lb}")
    A(f"  v_add_u32 v{aaddr}, s{st0}, v{t0}")
    A(f"  v_and_b32 v{t0}, 1, v{lane}")
    A(f"  v_mul_u32_u24 v{t0}, {BCOPY}, v{t0}")
    A(f"  v_bfe_u32 v{t1}, v{lane}, 1, 3")
    A(f"  v_lshlrev_b32 v{t1}, 6, v{t1}")
    A(f"  v_sub_u32 v{t0}, v{t0}, v{t1}")
    A(f"  v_lshl_add_u32 v{t0}, v{t2}, 4, v{t0}")
    A(f"  s_add_u32 s{st0}, s{st0}, {BOFF + 448}")
    A(f"  v_add_u32 v{baddr}, s{st0}, v{t0}")
    acc = V(32, 4); AF = V(64, 4); BF = V(64, 4); AD = V(4, 4)
    for i in range(32): A(f"  v_mov_b32 v{acc+i}, 0")
    A(f"  s_and_b32 s{st0}, s{s_d}, 1")
    A(f"  s_lshl_b32 s{st0}, s{st0}, 4")
    A(f"  s_lshr_b32 s{s_D}, s{s_D}, s{st0}")
    A(f"  s_and_b32 s{s_D}, s{s_D}, 0xffff")
    A(f"  v_and_b32 v{t0}, 3, v{lane}")
    A(f"  v_lshlrev_b32 v{t0}, 1, v{t0}")
    A(f"  v_bfe_u32 v{t1}, v{lane}, 2, 2")
    A(f"  v_lshl_add_u32 v{t0}, v{t1}, 3, v{t0}")
    A(f"  v_lshl_add_u32 v{t0}, v{t2}, 3, v{t0}")
    A(f"  v_sub_u32 v{t0}, 30, v{t0}")
    A(f"  v_mov_b32 v{t1}, s{s_D}")
    for i in range(4):
        A(f"  v_cmp_eq_u32 vcc, {2*i}, v{t0}")
        A(f"  s_nop 1")
        A(f"  v_cndmask_b32 v{AD+i}, 0, v{t1}, vcc")
    A(f"  s_cmp_eq_u32 s{s_hw}, 0")
    A(f"  s_cselect_b32 s{st0}, -1, 0")
    for i in range(4): A(f"  v_and_b32 v{AD+i}, s{st0}, v{AD+i}")
    A(f"  s_waitcnt lgkmcnt(0)")
    A(f"  s_barrier")
    if start_hook: start_hook()
    def reads(kp):
        par = kp % 2
        L = []
        order = [('B', 0), ('A', 0)] + [x for i in range(1, 8) for x in (('B', i), ('A', i))]
        for (w, i) in order:
            if w == 'B': L.append(f"  ds_read_b128 {v(BF+32*par+4*i,4)}, v{baddr} offset:{512*(7-i) + 64*kp}")
            else:        L.append(f"  ds_read_b128 {v(AF+32*par+4*i,4)}, v{aaddr} offset:{512*i + 64*kp}")
        return L
    r0 = reads(0)
    for l in r0[:8]: A(l)
    A(f"  s_waitcnt lgkmcnt(4)")
    for l in r0[8:]: A(l)
    for kp in range(4):
        par = kp % 2
        A(f"  s_waitcnt lgkmcnt(0)")
        nr = reads(kp + 1) if kp < 3 else []
        mf = []
        for a_ in range(8):
            for b in range(8 - a_):
                i = a_ + b
                mf.append(f"  v_mfma_f32_16x16x32_bf16 {v(acc+4*i,4)}, {v(AF+32*par+4*a_,4)}, {v(BF+32*par+4*b,4)}, {v(acc+4*i,4)}")
        if kp == 0:
            mf += [f"  v_mfma_f32_16x16x32_bf16 {v(acc+4*b,4)}, {v(AD,4)}, {v(BF+4*b,4)}, {v(acc+4*b,4)}" for b in range(8)]
        k = 0
        for i, m in enumerate(mf):
            A(m)
            if i % 2 == 1 and k < len(nr):
                A(nr[k]); k += 1
        if kp == MIDKP and mid_hook: mid_hook()
    A.nop(10)
    return acc, AF, BF

def conv_finish(A, R, acc, AF, BF, scratch, vm, store_sc):
    lane = R['lane']; t0, t1 = R['t0'], R['t1']; sw = R['s_wave']; st0, st1 = R['st0'], R['st1']; SWS = R['srd_ws']
    A(f"  s_barrier")
    A(f"  v_lshlrev_b32 v{t0}, 4, v{lane}")
    A(f"  s_lshl_b32 s{st0}, s{sw}, 12")
    A(f"  s_add_u32 s{st0}, s{st0}, {scratch}")
    A(f"  v_add_u32 v{t1}, s{st0}, v{t0}")
    Lh1 = A.uniq("cvh"); Lj = A.uniq("cvj")
    A(f"  s_cmp_lg_u32 s{s_hw}, 0")
    A(f"  s_cbranch_scc1 {Lh1}")
    for i in range(4): A(f"  ds_write_b128 v{t1}, {v(acc+16+4*i,4)} offset:{1024*i}")
    A(f"  s_branch {Lj}")
    A.label(Lh1)
    for i in range(4): A(f"  ds_write_b128 v{t1}, {v(acc+4*i,4)} offset:{1024*i}")
    A(f"  s_nop 1")
    for i in range(16): A(f"  v_mov_b32 v{acc+i}, v{acc+16+i}")
    A.label(Lj)
    A(f"  v_xor_b32 v{t1}, 4096, v{t1}")
    A(f"  v_and_b32 v{t0}, 1, v{lane}")
    A(f"  v_cmp_eq_u32 s[62:63], 1, v{t0}")
    A(f"  v_lshlrev_b32 v{t0}, 3, v{t0}")
    A(f"  v_bfe_u32 v{R['t2']}, v{lane}, 1, 3")
    A(f"  v_lshl_add_u32 v{t0}, v{R['t2']}, 6, v{t0}")
    A(f"  v_lshrrev_b32 v{R['t2']}, 4, v{lane}")
    A(f"  v_lshl_add_u32 v{t0}, v{R['t2']}, 4, v{t0}")
    A(f"  s_lshl_b32 s{st0}, s{s_d}, 12")
    A(f"  s_lshl_b32 s{st1}, s{s_hw}, 11")
    A(f"  s_add_u32 s{st0}, s{st0}, s{st1}")
    A(f"  s_add_u32 s{st0}, s{st0}, {WS_ZT}")
    A(f"  s_waitcnt lgkmcnt(0)")
    A(f"  s_barrier")
    o = AF
    for i in range(4): A(f"  ds_read_b128 {v(o+4*i,4)}, v{t1} offset:{1024*i}")
    for i in range(4):
        A(f"  s_waitcnt lgkmcnt({3-i})")
        for j in range(4): A(f"  v_add_f32 v{acc+4*i+j}, v{acc+4*i+j}, v{o+4*i+j}")
    M = "s[62:63]"
    for i in range(4):
        b = BF + 8*i
        sa, sb, xa, xb2, p0, p1 = b, b+1, b+2, b+3, b+4, b+5
        r0, r1, r2, r3 = acc+4*i, acc+4*i+1, acc+4*i+2, acc+4*i+3
        A(f"  v_cndmask_b32 v{sa}, v{r2}, v{r0}, {M}")
        A(f"  v_cndmask_b32 v{sb}, v{r3}, v{r1}, {M}")
    for i in range(4):
        b = BF + 8*i
        sa, sb, xa, xb2 = b, b+1, b+2, b+3
        A(f"  v_mov_b32_dpp v{xa}, v{sa} quad_perm:[1,0,3,2] row_mask:0xf bank_mask:0xf")
        A(f"  v_mov_b32_dpp v{xb2}, v{sb} quad_perm:[1,0,3,2] row_mask:0xf bank_mask:0xf")
    A(f"  v_and_b32 v{t1}, 0xfffff000, v{t1}")
    A(f"  v_add_u32 v{R['t2']}, v{t1}, v{t0}")
    for i in range(4):
        b = BF + 8*i
        sa, sb, xa, xb2, p0, p1 = b, b+1, b+2, b+3, b+4, b+5
        r0, r1, r2, r3 = acc+4*i, acc+4*i+1, acc+4*i+2, acc+4*i+3
        A(f"  v_cndmask_b32 v{sa}, v{r0}, v{xa}, {M}")
        A(f"  v_cndmask_b32 v{sb}, v{xa}, v{r2}, {M}")
        A(f"  v_cndmask_b32 v{r0}, v{r1}, v{xb2}, {M}")
        A(f"  v_cndmask_b32 v{r2}, v{xb2}, v{r3}, {M}")
        A(f"  v_cvt_pk_bf16_f32 v{p0}, v{sa}, v{sb}")
        A(f"  v_cvt_pk_bf16_f32 v{p1}, v{r0}, v{r2}")
        A(f"  ds_write_b64 v{R['t2']}, {v(p0,2)} offset:{512*i}")
    A(f"  v_lshlrev_b32 v{t0}, 4, v{lane}")
    A(f"  v_add_u32 v{t1}, v{t1}, v{t0}")
    A(f"  s_waitcnt lgkmcnt(0)")
    A(f"  ds_read_b128 {v(o,4)}, v{t1}")
    A(f"  ds_read_b128 {v(o+4,4)}, v{t1} offset:1024")
    A(f"  s_waitcnt lgkmcnt(1)")
    A(f"  buffer_store_dwordx4 {v(o,4)}, v{t0}, s[{SWS}:{SWS+3}], s{st0} offen{store_sc}"); vm.issue("zst")
    A(f"  s_waitcnt lgkmcnt(0)")
    A(f"  buffer_store_dwordx4 {v(o+4,4)}, v{t0}, s[{SWS}:{SWS+3}], s{st0} offen offset:1024{store_sc}"); vm.issue("zst")


def conv_main3(A, R, lg, vm, w_step, start_hook, ST, nw=32, kp2_hook=None):
    lane = R['lane']; t0, t1, t2 = R['t0'], R['t1'], R['t2']; st0 = R['st0']
    acc, AF, BF, AD, aaddr, baddr = 20, 52, 84, 116, 120, 121
    A(f"  v_and_b32 v{t0}, 3, v{lane}")
    A(f"  v_add_u32 v{t0}, 1, v{t0}")
    A(f"  v_lshrrev_b32 v{t1}, 2, v{t0}")
    A(f"  v_and_b32 v{t0}, 3, v{t0}")
    A(f"  v_mul_u32_u24 v{t0}, {ACOPY}, v{t0}")
    A(f"  v_bfe_u32 v{t2}, v{lane}, 2, 2")
    A(f"  v_add_u32 v{t1}, v{t1}, v{t2}")
    A(f"  v_lshrrev_b32 v{t2}, 4, v{lane}")
    A(f"  v_add_u32 v{t1}, v{t1}, v{t2}")
    A(f"  v_lshl_add_u32 v{t0}, v{t1}, 4, v{t0}")
    A(f"  s_lshl_b32 s{st0}, s{s_hw}, 8")
    A(f"  s_add_u32 s{st0}, s{st0}, s{s_lb}")
    A(f"  v_add_u32 v{aaddr}, s{st0}, v{t0}")
    A(f"  v_and_b32 v{t0}, 1, v{lane}")
    A(f"  v_mul_u32_u24 v{t0}, {BCOPY}, v{t0}")
    A(f"  v_bfe_u32 v{t1}, v{lane}, 1, 3")
    A(f"  v_lshlrev_b32 v{t1}, 6, v{t1}")
    A(f"  v_sub_u32 v{t0}, v{t0}, v{t1}")
    A(f"  v_lshl_add_u32 v{t0}, v{t2}, 4, v{t0}")
    A(f"  s_add_u32 s{st0}, s{st0}, {BOFF + 448}")
    A(f"  v_add_u32 v{baddr}, s{st0}, v{t0}")
    for i in range(32): A(f"  v_mov_b32 v{acc+i}, 0")
    A(f"  s_and_b32 s{st0}, s{s_d}, 1")
    A(f"  s_lshl_b32 s{st0}, s{st0}, 4")
    A(f"  s_lshr_b32 s{s_D}, s{s_D}, s{st0}")
    A(f"  s_and_b32 s{s_D}, s{s_D}, 0xffff")
    A(f"  s_cmp_eq_u32 s{s_hw}, 0")
    A(f"  s_cselect_b32 s{s_D}, s{s_D}, 0")
    A(f"  v_and_b32 v{t0}, 3, v{lane}")
    A(f"  v_lshlrev_b32 v{t0}, 1, v{t0}")
    A(f"  v_bfe_u32 v{t1}, v{lane}, 2, 2")
    A(f"  v_lshl_add_u32 v{t0}, v{t1}, 3, v{t0}")
    A(f"  v_lshl_add_u32 v{t0}, v{t2}, 3, v{t0}")
    A(f"  v_sub_u32 v{t0}, 30, v{t0}")
    A(f"  v_mov_b32 v{t1}, s{s_D}")
    for i in range(4):
        A(f"  v_cmp_eq_u32 vcc, {2*i}, v{t0}")
        A(f"  s_nop 1")
        A(f"  v_cndmask_b32 v{AD+i}, 0, v{t1}, vcc")
    vm.wait(A, "Ost")
    A(f"  s_waitcnt lgkmcnt(0)")
    A(f"  s_barrier")
    start_hook()
    def rdA(kp, a_):
        A(f"  ds_read_b128 {v(AF+4*a_,4)}, v{aaddr} offset:{512*a_ + 64*kp}"); lg.issue(f"A{a_}")
    def rdB(kp, b):
        A(f"  ds_read_b128 {v(BF+4*b,4)}, v{baddr} offset:{512*(7-b) + 64*kp}"); lg.issue(f"B{b}")
    rdB(0, 0); rdA(0, 7); rdA(0, 6); rdB(0, 1); rdA(0, 5); rdB(0, 2); rdA(0, 4); rdB(0, 3)
    lg.wait(A, "A7")
    rest0 = [('A', 3), ('B', 4), ('A', 2), ('B', 5), ('A', 1), ('B', 6), ('A', 0), ('B', 7)]
    nm = 0; wi = 0; pend2 = None
    total = 4*36 + 8
    spacing = total / (nw + 0.5)
    for kp in range(4):
        if kp == 2 and kp2_hook: kp2_hook()
        for a_ in range(7, -1, -1):
            for b in range(8 - a_):
                lg.wait(A, [f"A{a_}", f"B{b}"])
                A(f"  v_mfma_f32_16x16x32_bf16 {v(acc+4*(a_+b),4)}, {v(AF+4*a_,4)}, {v(BF+4*b,4)}, {v(acc+4*(a_+b),4)}")
                nm += 1
                if kp == 0 and rest0:
                    w, i = rest0.pop(0)
                    (rdA if w == 'A' else rdB)(0, i)
                if a_ == 0:
                    if kp == 0:
                        A(f"  v_mfma_f32_16x16x32_bf16 {v(acc+4*b,4)}, {v(AD,4)}, {v(BF+4*b,4)}, {v(acc+4*b,4)}")
                        nm += 1
                    if kp < 3: rdB(kp + 1, b)
                if pend2 is not None and nm >= pend_at + 3:
                    pend2(); pend2 = None
                if wi < nw and nm >= spacing * wi + 2 and pend2 is None:
                    pend_at = nm
                    f1, f2 = w_step(wi); f1(); pend2 = f2; wi += 1
            if kp < 3: rdA(kp + 1, a_)
    if pend2: pend2()
    while wi < nw:
        f1, f2 = w_step(wi); f1(); f2(); wi += 1
    A.nop(8)
    return acc

def conv_finish3(A, R, acc, AF, BF, scratch, vm, store_sc):
    conv_finish(A, R, acc, AF, BF, scratch, vm, store_sc)


def conv_finish4(A, R, acc, AF, BF, scratch, vm, lg, store_sc, hooks):
    lane = R['lane']; t0, t1 = R['t0'], R['t1']; sw = R['s_wave']; st0, st1 = R['st0'], R['st1']; SWS = R['srd_ws']
    lg.drain(A)
    A(f"  s_barrier")
    hooks['after_bar1']()
    A(f"  v_lshlrev_b32 v{t0}, 4, v{lane}")
    A(f"  s_lshl_b32 s{st0}, s{sw}, 12")
    A(f"  s_add_u32 s{st0}, s{st0}, {scratch}")
    A(f"  v_add_u32 v{t1}, s{st0}, v{t0}")
    Lh1 = A.uniq("cvh"); Lj = A.uniq("cvj")
    A(f"  s_cmp_lg_u32 s{s_hw}, 0")
    A(f"  s_cbranch_scc1 {Lh1}")
    for i in range(4): A(f"  ds_write_b128 v{t1}, {v(acc+16+4*i,4)} offset:{1024*i}")
    A(f"  s_branch {Lj}")
    A.label(Lh1)
    for i in range(4): A(f"  ds_write_b128 v{t1}, {v(acc+4*i,4)} offset:{1024*i}")
    A(f"  s_nop 1")
    for i in range(16): A(f"  v_mov_b32 v{acc+i}, v{acc+16+i}")
    A.label(Lj)
    for i in range(4): lg.issue("xw")
    A(f"  v_xor_b32 v{t1}, 4096, v{t1}")
    tz = BF + 30
    A(f"  v_and_b32 v{t0}, 1, v{lane}")
    A(f"  v_cmp_eq_u32 s[62:63], 1, v{t0}")
    A(f"  v_lshlrev_b32 v{t0}, 3, v{t0}")
    A(f"  v_bfe_u32 v{R['t2']}, v{lane}, 1, 3")
    A(f"  v_lshl_add_u32 v{t0}, v{R['t2']}, 6, v{t0}")
    A(f"  v_lshrrev_b32 v{R['t2']}, 4, v{lane}")
    A(f"  v_lshl_add_u32 v{tz}, v{R['t2']}, 4, v{t0}")
    tx = BF + 31
    A(f"  v_mov_b32 v{tx}, v{t1}")
    hooks['after_wr']()
    lg.drain(A)
    A(f"  s_barrier")
    o = AF
    for i in range(4):
        A(f"  ds_read_b128 {v(o+4*i,4)}, v{tx} offset:{1024*i}"); lg.issue(f"xr{i}")
    hooks['after_bar2']()
    for i in range(4):
        lg.wait(A, f"xr{i}")
        for j in range(4): A(f"  v_add_f32 v{acc+4*i+j}, v{acc+4*i+j}, v{o+4*i+j}")
    hooks['after_add']()
    M = "s[62:63]"
    for i in range(4):
        b = BF + 6*i
        r0, r1, r2, r3 = acc+4*i, acc+4*i+1, acc+4*i+2, acc+4*i+3
        A(f"  v_cndmask_b32 v{b}, v{r2}, v{r0}, {M}")
        A(f"  v_cndmask_b32 v{b+1}, v{r3}, v{r1}, {M}")
    for i in range(4):
        b = BF + 6*i
        A(f"  v_mov_b32_dpp v{b+2}, v{b} quad_perm:[1,0,3,2] row_mask:0xf bank_mask:0xf")
        A(f"  v_mov_b32_dpp v{b+3}, v{b+1} quad_perm:[1,0,3,2] row_mask:0xf bank_mask:0xf")
    A(f"  v_and_b32 v{tx}, 0xfffff000, v{tx}")
    A(f"  v_add_u32 v{tz}, v{tx}, v{tz}")
    for i in range(4):
        b = BF + 6*i
        sa, sb, xa, xb2, p0 = b, b+1, b+2, b+3, b+4
        r0, r1, r2, r3 = acc+4*i, acc+4*i+1, acc+4*i+2, acc+4*i+3
        A(f"  v_cndmask_b32 v{sa}, v{r0}, v{xa}, {M}")
        A(f"  v_cndmask_b32 v{sb}, v{xa}, v{r2}, {M}")
        A(f"  v_cndmask_b32 v{r0}, v{r1}, v{xb2}, {M}")
        A(f"  v_cndmask_b32 v{r2}, v{xb2}, v{r3}, {M}")
        A(f"  v_cvt_pk_bf16_f32 v{p0}, v{sa}, v{sb}")
        A(f"  v_cvt_pk_bf16_f32 v{p0+1}, v{r0}, v{r2}")
        A(f"  ds_write_b64 v{tz}, {v(p0,2)} offset:{512*i}"); lg.issue("zw")
    hooks['after_pack']()
    A(f"  v_lshlrev_b32 v{t0}, 4, v{lane}")
    A(f"  v_add_u32 v{tx}, v{tx}, v{t0}")
    lg.wait(A, "zw")
    A(f"  ds_read_b128 {v(o,4)}, v{tx}"); lg.issue("zr0")
    A(f"  ds_read_b128 {v(o+4,4)}, v{tx} offset:1024"); lg.issue("zr1")
    A(f"  s_lshl_b32 s{st0}, s{s_d}, 12")
    A(f"  s_lshl_b32 s{st1}, s{s_hw}, 11")
    A(f"  s_add_u32 s{st0}, s{st0}, s{st1}")
    A(f"  s_add_u32 s{st0}, s{st0}, {WS_ZT}")
    lg.wait(A, "zr0")
    A(f"  buffer_store_dwordx4 {v(o,4)}, v{t0}, s[{SWS}:{SWS+3}], s{st0} offen{store_sc}"); vm.issue("zst")
    lg.wait(A, "zr1")
    A(f"  buffer_store_dwordx4 {v(o+4,4)}, v{t0}, s[{SWS}:{SWS+3}], s{st0} offen offset:1024{store_sc}"); vm.issue("zst")
```

```python
from common import *
from gemm import GemmCfg, gemm_setup
from gemm3 import *
import k2 as K2
import conv as CONV
import os
from common import MAPPING
OPT = set(os.environ.get('FOPT', '').split(','))

WS_FLAG = 17 * MB
F_KV, F_KVT, F_O, F_Z = 0, 1, 2, 3
FSTRIDE = 64
SPIN_LIMIT = 1 << 20
SC = " sc1"

def flag_off(kind): return WS_FLAG + kind * 256 * FSTRIDE

def publish(A, R, kind, all_waves=True):
    SWS = R['srd_ws']
    if all_waves:
        A(f"  s_waitcnt vmcnt(0)")
        A(f"  s_barrier")
    L = A.uniq("pub")
    A(f"  s_cmp_lg_u32 s{R['s_wave']}, 0")
    A(f"  s_cbranch_scc1 {L}")
    if not all_waves:
        A(f"  s_waitcnt vmcnt(0)")
    A(f"  s_lshl_b32 s{R['st0']}, s32, 6")
    A(f"  s_add_u32 s{R['st0']}, s{R['st0']}, {flag_off(kind)}")
    A(f"  v_mov_b32 v{R['t0']}, 0")
    A(f"  v_mov_b32 v{R['t1']}, s{R['s_tag']}")
    A(f"  s_mov_b64 exec, 1")
    A(f"  buffer_store_dword v{R['t1']}, v{R['t0']}, s[{SWS}:{SWS+3}], s{R['st0']} offen sc1")
    A(f"  s_mov_b64 exec, -1")
    A.label(L)

def wait_flags(A, R, kind, mode):
    SWS = R['srd_ws']; lane = R['lane']; t0, t1, t2, t3 = R['t0'], R['t1'], R['t2'], R['t3']
    L = A.uniq("wt"); LP = A.uniq("poll"); LD = A.uniq("pd")
    A(f"  s_cmp_lg_u32 s{R['s_wave']}, 0")
    A(f"  s_cbranch_scc1 {L}")
    if mode == 'all':
        A(f"  v_lshlrev_b32 v{t0}, 6, v{lane}")
        A(f"  s_mov_b32 s{R['st0']}, {flag_off(kind)}")
    elif mode == 'grp32':
        A(f"  v_and_b32 v{t0}, 31, v{lane}")
        A(f"  v_lshlrev_b32 v{t0}, 6, v{t0}")
        A(f"  s_lshl_b32 s{R['st0']}, s{R['s_hg']}, 11")
        A(f"  s_add_u32 s{R['st0']}, s{R['st0']}, {flag_off(kind)}")
    else:
        A(f"  v_and_b32 v{t0}, 7, v{lane}")
        A(f"  v_lshlrev_b32 v{t0}, 11, v{t0}")
        A(f"  s_lshl_b32 s{R['st0']}, s{R['s_rb']}, 6")
        A(f"  s_add_u32 s{R['st0']}, s{R['st0']}, {flag_off(kind)}")
    A(f"  s_mov_b32 s{R['st1']}, 0")
    A.label(LP)
    n = 4 if mode == 'all' else 1
    fl = R['fl']
    for i in range(n):
        if i == 0:
            A(f"  buffer_load_dword v{fl}, v{t0}, s[{SWS}:{SWS+3}], s{R['st0']} offen sc1")
        else:
            A(f"  v_add_u32 v{t1}, {i*4096}, v{t0}")
            A(f"  buffer_load_dword v{fl+i}, v{t1}, s[{SWS}:{SWS+3}], s{R['st0']} offen sc1")
    A(f"  s_waitcnt vmcnt(0)")
    A(f"  v_xor_b32 v{fl}, s{R['s_tag']}, v{fl}")
    for i in range(1, n):
        A(f"  v_xor_b32 v{fl+i}, s{R['s_tag']}, v{fl+i}")
        A(f"  v_or_b32 v{fl}, v{fl}, v{fl+i}")
    A(f"  v_cmp_ne_u32 vcc, 0, v{fl}")
    A(f"  s_nop 4")
    A(f"  s_cmp_eq_u64 vcc, 0")
    A(f"  s_cbranch_scc1 {LD}")
    A(f"  s_add_u32 s{R['st1']}, s{R['st1']}, 1")
    A(f"  s_cmp_lt_u32 s{R['st1']}, {SPIN_LIMIT}")
    A(f"  s_sleep 1")
    A(f"  s_cbranch_scc1 {LP}")
    A.label(LD)
    A.label(L)
    A(f"  s_barrier")

def get_tag(A, R):
    SD = R['srd_dbg']; t0, t1 = R['t0'], R['t1']
    L = A.uniq("tg"); LP = A.uniq("tgp"); LD = A.uniq("tgd")
    A(f"  s_cmp_lg_u32 s{R['s_wave']}, 0")
    A(f"  s_cbranch_scc1 {L}")
    A(f"  s_mov_b32 s{R['st1']}, 0")
    A(f"  v_mov_b32 v{t0}, 0")
    A.label(LP)
    A(f"  buffer_load_dword v{t1}, v{t0}, s[{SD}:{SD+3}], 0 offen sc1")
    A(f"  s_waitcnt vmcnt(0)")
    A(f"  v_readfirstlane_b32 s{R['s_tag']}, v{t1}")
    A(f"  s_nop 4")
    A(f"  s_cmp_lg_u32 s{R['s_tag']}, 0")
    A(f"  s_cbranch_scc1 {LD}")
    A(f"  s_add_u32 s{R['st1']}, s{R['st1']}, 1")
    A(f"  s_cmp_lt_u32 s{R['st1']}, {SPIN_LIMIT}")
    A(f"  s_sleep 1")
    A(f"  s_cbranch_scc1 {LP}")
    A.label(LD)
    A.label(L)

def gen_fused(A, name):
    kernel_header(A, name)
    EXIT = f"{name}_exit"
    prologue(A, 256, EXIT)
    ST = Stamps(A, 0)
    ST(real=True); ST()
    V = Alloc(1, 256, "v")
    R = {}
    for n in ['lane', 't0', 't1', 't2', 't3', 'tid', 'gval']:
        R[n] = V()
    R['fl'] = V(4)
    R['qf'] = V(8, 4)
    R.update(s_wave=4, s_rb=5, s_hg=6, st0=7, st1=3, s_mask=94, srd_x=8, srd_w=12, srd_w2=16, srd_ws=28, srd_dbg=96,
             s_tag=100, s_lid=32, s_w1024=33, s_w2048=34, s_kst=35, s_gst=36)
    SK, SV, SWS, SG = 20, 24, 28, 20
    lane = R['lane']; t0, t1, t2, t3 = R['t0'], R['t1'], R['t2'], R['t3']; tid = R['tid']
    st0, st1 = R['st0'], R['st1']; sw = R['s_wave']
    A(f"  v_mov_b32 v{tid}, v0")
    wave_id(A, sw, lane, t0)
    wg_map(A, R['s_rb'], R['s_hg'], st0)
    A(f"  s_lshl_b32 s32, s{R['s_hg']}, 5")
    A(f"  s_add_u32 s32, s32, s{R['s_rb']}")
    A(f"  s_lshl_b32 s{R['s_w1024']}, s{sw}, 10")
    A(f"  s_lshl_b32 s{R['s_w2048']}, s{sw}, 11")
    if 'norot' in OPT:
        A(f"  s_mov_b32 s{R['s_kst']}, 0")
    elif 'rotx' in OPT:
        A(f"  s_and_b32 s{R['s_kst']}, s2, 7")
        A(f"  s_lshl_b32 s{R['s_kst']}, s{R['s_kst']}, 1")
    else:
        if MAPPING == 0:
            A(f"  s_and_b32 s{R['s_kst']}, s{R['s_rb']}, 3")
            A(f"  s_lshl_b32 s{R['s_kst']}, s{R['s_kst']}, 1")
            A(f"  s_add_u32 s{R['s_kst']}, s{R['s_kst']}, s{R['s_hg']}")
            A(f"  s_lshl_b32 s{R['s_kst']}, s{R['s_kst']}, 1")
        else:
            A(f"  s_and_b32 s{R['s_kst']}, s{R['s_hg']}, 3")
            A(f"  s_lshl_b32 s{R['s_kst']}, s{R['s_kst']}, 1")
            A(f"  s_add_u32 s{R['s_kst']}, s{R['s_kst']}, s{R['s_rb']}")
            A(f"  s_lshl_b32 s{R['s_kst']}, s{R['s_kst']}, 1")
        A(f"  s_and_b32 s{R['s_kst']}, s{R['s_kst']}, 15")
    A(f"  s_lshl_b32 s{R['s_gst']}, s{R['s_kst']}, 9")
    A(f"  s_mov_b32 s37, s{R['s_kst']}")
    A("  s_waitcnt lgkmcnt(0)")
    srd(A, R['srd_x'], 'q', 4*MB)
    srd(A, R['srd_w'], 'wq', 2*MB)
    srd(A, SWS, 'ws', WS_SIZE)
    mA = V.mark()
    c = GemmCfg(with_kv=True)
    def nt(k): return " nt" if k in OPT else ""
    NT = nt('ntprep')
    R['scx'] = nt('ntx')
    R['scw'] = nt('ntw')
    for n in ['xoff', 'woff0', 'woff1', 'w2off', 'abase', 'aaddr', 'x16base', 'x16addr', 'w2base', 'w2inc']:
        R[n] = V()
    R['w2addr'] = V(2)
    R['bbase'] = V(2); R['baddr'] = V(2)
    R['acc'] = V(32, 4); R['acc16'] = V(4, 4)
    R['af'] = V(16, 4); R['bf'] = V(32, 4); R['x16f'] = V(8, 4); R['w2f'] = V(8, 4)
    R['big'] = V(32, 4)
    kr = V(20, 4); vr = V(8, 4); wr = V(16, 4); gw = V(1); po = V(1); po2 = V(1)
    A(f"  s_cmp_lt_u32 s{R['s_hg']}, 4")
    A(f"  s_cselect_b32 s16, s{ptr('wk')}, s{ptr('wv')}")
    A(f"  s_cselect_b32 s17, s{ptr('wk')+1}, s{ptr('wv')+1}")
    A(f"  s_mov_b32 s18, 65536")
    A(f"  s_mov_b32 s19, 0x20000")
    srd(A, SG, 'gate', 2048)
    A(f"  v_lshlrev_b32 v{t0}, 2, v{tid}")
    A(f"  buffer_load_dword v{gw}, v{t0}, s[{SG}:{SG+3}], 0 offen")
    gemm3_setup_dma(A, c, R)
    gemm3_prologue_issue(A, c, R, c.NSLOT - 1)
    srd(A, R['srd_dbg'], 'dbg', 256)
    Ln = A.uniq("nonce")
    A(f"  s_or_b32 s{st0}, s2, s{sw}")
    A(f"  s_cmp_lg_u32 s{st0}, 0")
    A(f"  s_cbranch_scc1 {Ln}")
    A(f"  s_memrealtime s[38:39]")
    A(f"  s_waitcnt lgkmcnt(0)")
    A(f"  s_or_b32 s38, s38, 1")
    A(f"  v_mov_b32 v{t1}, s38")
    A(f"  v_mov_b32 v{t0}, 0")
    A(f"  s_mov_b64 exec, 1")
    A(f"  buffer_store_dword v{t1}, v{t0}, s[{R['srd_dbg']}:{R['srd_dbg']+3}], 0 offen sc1")
    A(f"  s_mov_b64 exec, -1")
    A(f"  s_waitcnt vmcnt(0)")
    A.label(Ln)
    gemm3_setup_reads(A, c, R, perm_cols=True)
    A(f"  s_waitcnt vmcnt({4*(c.NSLOT-1)})")
    A(f"  v_lshlrev_b32 v{t0}, 4, v{tid}")
    A(f"  v_add_u32 v{t0}, {c.G4_OFF}, v{t0}")
    A(f"  v_and_b32 v{t1}, 0xffff, v{gw}")
    A(f"  v_lshrrev_b32 v{t2}, 16, v{gw}")
    A(f"  ds_write_b32 v{t0}, v{t1}")
    A(f"  ds_write_b32 v{t0}, v{t1} offset:4")
    A(f"  ds_write_b32 v{t0}, v{t2} offset:8")
    A(f"  ds_write_b32 v{t0}, v{t2} offset:12")
    SSH2 = 60
    def prep_hook(st):
        L = []
        if st == 11:
            B = Asm()
            srd(B, SK, 'k', 4*MB)
            srd(B, SV, 'v', 4*MB)
            srd(B, SSH2, 'shift', 8192)
            B(f"  v_lshrrev_b32 v{t2}, 4, v{tid}")
            B(f"  v_lshlrev_b32 v{t2}, 1, v{t2}")
            B(f"  s_lshl_b32 s{st0}, s{R['s_rb']}, 6")
            B(f"  v_add_u32 v{t2}, s{st0}, v{t2}")
            B(f"  v_and_b32 v{t3}, 15, v{tid}")
            B(f"  v_lshlrev_b32 v{t3}, 4, v{t3}")
            B(f"  s_lshl_b32 s{st0}, s{R['s_hg']}, 8")
            B(f"  v_add_u32 v{t3}, s{st0}, v{t3}")
            B(f"  v_lshlrev_b32 v{t2}, 11, v{t2}")
            B(f"  v_add_u32 v{po}, v{t2}, v{t3}")
            B(f"  v_lshlrev_b32 v{po2}, 2, v{t3}")
            for j in range(3):
                B(f"  v_add_u32 v{t2}, {(j-3)*2048 & 0xffffffff}, v{po}")
                B(f"  buffer_load_dwordx4 {v(kr+4*j,4)}, v{t2}, s[{SK}:{SK+3}], 0 offen{NT}")
            return B.lines, 3
        if st == 12:
            for j in range(3, 5):
                L.append(f"  buffer_load_dwordx4 {v(kr+4*j,4)}, v{po}, s[{SK}:{SK+3}], 0 offen offset:{(j-3)*2048}{NT}")
            for j in range(2):
                L.append(f"  buffer_load_dwordx4 {v(vr+4*j,4)}, v{po}, s[{SV}:{SV+3}], 0 offen offset:{j*2048}{NT}")
            return L, 4
        if st == 13:
            for j in range(4):
                L.append(f"  buffer_load_dwordx4 {v(wr+4*j,4)}, v{po2}, s[{SSH2}:{SSH2+3}], 0 offen offset:{j*16}")
            return L, 4
        return [], 0
    for i in range(32): A(f"  v_mov_b32 v{R['acc']+i}, 0")
    for i in range(4): A(f"  v_mov_b32 v{R['acc16']+i}, 0")
    A(f"  s_waitcnt lgkmcnt(0)")
    ST()
    gemm3_main(A, c, R, pre=0, tail_hook=prep_hook, ST=ST)
    ST()
    a16 = R['acc16']
    A(f"  s_barrier")
    A(f"  s_and_b32 s{st0}, s{sw}, 3")
    A(f"  s_lshl_b32 s{st0}, s{st0}, 10")
    A(f"  s_lshr_b32 s{st1}, s{sw}, 2")
    A(f"  s_lshl_b32 s{st1}, s{st1}, 12")
    A(f"  s_add_u32 s{st0}, s{st0}, s{st1}")
    A(f"  v_lshrrev_b32 v{t0}, 4, v{lane}")
    A(f"  v_lshlrev_b32 v{t0}, 8, v{t0}")
    A(f"  v_and_b32 v{t1}, 15, v{lane}")
    A(f"  v_lshlrev_b32 v{t1}, 2, v{t1}")
    A(f"  v_add_u32 v{t0}, v{t0}, v{t1}")
    A(f"  v_add_u32 v{t0}, s{st0}, v{t0}")
    A.nop(8)
    for r in range(4):
        A(f"  ds_write_b32 v{t0}, v{a16+r} offset:{r*64}")
    A(f"  s_waitcnt lgkmcnt(0)")
    A(f"  s_barrier")
    get_tag(A, R)
    L_notw0 = A.uniq("w0"); L_isV = A.uniq("isv"); L_st = A.uniq("kvst")
    x = R['af']; y = R['bf']
    A(f"  s_cmp_lg_u32 s{sw}, 0")
    A(f"  s_cbranch_scc1 {L_notw0}")
    A(f"  s_cmp_ge_u32 s{R['s_hg']}, 4")
    A(f"  s_cbranch_scc1 {L_isV}")
    A(f"  v_lshlrev_b32 v{t0}, 6, v{lane}")
    A(f"  ds_read_b128 {v(x,4)}, v{t0}")
    A(f"  ds_read_b128 {v(x+4,4)}, v{t0} offset:16")
    A(f"  ds_read_b128 {v(y,4)}, v{t0} offset:4096")
    A(f"  ds_read_b128 {v(y+4,4)}, v{t0} offset:4112")
    A(f"  v_and_b32 v{t0}, 0x13, v{lane}")
    A(f"  v_bfe_u32 v{t1}, v{lane}, 2, 1")
    A(f"  v_lshlrev_b32 v{t1}, 3, v{t1}")
    A(f"  v_or_b32 v{t0}, v{t0}, v{t1}")
    A(f"  v_bfe_u32 v{t1}, v{lane}, 3, 1")
    A(f"  v_lshlrev_b32 v{t1}, 2, v{t1}")
    A(f"  v_or_b32 v{t0}, v{t0}, v{t1}")
    A(f"  v_lshlrev_b32 v{t0}, 4, v{t0}")
    A(f"  v_lshrrev_b32 v{t1}, 5, v{lane}")
    A(f"  v_lshlrev_b32 v{t1}, 12, v{t1}")
    A(f"  v_add_u32 v{t0}, v{t0}, v{t1}")
    A(f"  s_lshl_b32 s{st0}, s{R['s_rb']}, 13")
    A(f"  s_lshl_b32 s{st1}, s{R['s_hg']}, 9")
    A(f"  s_add_u32 s{st0}, s{st0}, s{st1}")
    A(f"  s_add_u32 s{st0}, s{st0}, {WS_KVF}")
    A(f"  s_branch {L_st}")
    A.label(L_isV)
    A(f"  v_lshrrev_b32 v{t0}, 3, v{lane}")
    A(f"  v_lshlrev_b32 v{t0}, 9, v{t0}")
    A(f"  v_and_b32 v{t1}, 7, v{lane}")
    A(f"  v_lshlrev_b32 v{t1}, 2, v{t1}")
    A(f"  v_add_u32 v{t0}, v{t0}, v{t1}")
    for i in range(8):
        A(f"  ds_read_b32 v{x+i}, v{t0} offset:{i*64}")
    A(f"  s_waitcnt lgkmcnt(0)")
    for i in range(8):
        A(f"  ds_read_b32 v{y+i}, v{t0} offset:{4096+i*64}")
    A(f"  s_sub_u32 s{st0}, s{R['s_hg']}, 4")
    A(f"  s_lshl_b32 s{st0}, s{st0}, 3")
    A(f"  v_and_b32 v{t0}, 7, v{lane}")
    A(f"  v_add_u32 v{t0}, s{st0}, v{t0}")
    A(f"  v_and_b32 v{t1}, 3, v{t0}")
    A(f"  v_bfe_u32 v{t2}, v{t0}, 2, 2")
    A(f"  v_lshlrev_b32 v{t2}, 3, v{t2}")
    A(f"  v_or_b32 v{t1}, v{t1}, v{t2}")
    A(f"  v_bfe_u32 v{t2}, v{t0}, 4, 1")
    A(f"  v_lshlrev_b32 v{t2}, 2, v{t2}")
    A(f"  v_or_b32 v{t1}, v{t1}, v{t2}")
    A(f"  v_lshlrev_b32 v{t1}, 4, v{t1}")
    A(f"  v_lshrrev_b32 v{t0}, 3, v{lane}")
    A(f"  v_and_b32 v{t2}, 3, v{t0}")
    A(f"  v_lshlrev_b32 v{t2}, 9, v{t2}")
    A(f"  v_add_u32 v{t1}, v{t1}, v{t2}")
    A(f"  v_lshrrev_b32 v{t0}, 2, v{t0}")
    A(f"  v_lshlrev_b32 v{t0}, 12, v{t0}")
    A(f"  v_add_u32 v{t0}, v{t0}, v{t1}")
    A(f"  s_lshl_b32 s{st0}, s{R['s_rb']}, 13")
    A(f"  s_add_u32 s{st0}, s{st0}, {WS_KVF + 2048}")
    A.label(L_st)
    A(f"  s_waitcnt lgkmcnt(0)")
    for i in range(8):
        A(f"  v_add_f32 v{x+i}, v{x+i}, v{y+i}")
    for i in range(4):
        A(f"  v_cvt_pk_bf16_f32 v{y+i}, v{x+2*i}, v{x+2*i+1}")
    A(f"  buffer_store_dwordx4 {v(y,4)}, v{t0}, s[{SWS}:{SWS+3}], s{st0} offen{SC}")
    A.label(L_notw0)
    publish(A, R, F_KV, all_waves=False)
    ST()
    A(f"  s_and_b32 s{st0}, s{sw}, 1")
    A(f"  s_lshl_b32 s{st0}, s{st0}, 11")
    A(f"  v_and_b32 v{t0}, 31, v{lane}")
    A(f"  v_lshlrev_b32 v{t0}, 6, v{t0}")
    A(f"  v_add_u32 v{t0}, s{st0}, v{t0}")
    A(f"  ds_read_b32 v{t1}, v{t0} offset:32")
    A(f"  ds_read_b32 v{t2}, v{t0} offset:{4096+32}")
    g = R['gval']
    A(f"  s_waitcnt lgkmcnt(0)")
    A(f"  v_add_f32 v{g}, v{t1}, v{t2}")
    A(f"  v_cvt_pk_bf16_f32 v{g}, v{g}, v{g}")
    A(f"  v_lshlrev_b32 v{g}, 16, v{g}")
    A(f"  v_mul_f32 v{g}, {f32bits(-1.4426950408889634)}, v{g}")
    A(f"  v_exp_f32 v{g}, v{g}")
    A(f"  s_nop 0")
    A(f"  v_add_f32 v{g}, 1.0, v{g}")
    A(f"  v_rcp_f32 v{g}, v{g}")
    A(f"  s_nop 0")
    A(f"  v_cvt_pk_bf16_f32 v{g}, v{g}, v{g}")
    A(f"  v_lshlrev_b32 v{g}, 16, v{g}")
    gemm3_reduce(A, c, R, 16384)
    acc = R['acc']; qf = R['qf']
    A(f"  s_mov_b32 s{st0}, {f32bits(QSCALE)}")
    for i in range(16):
        A(f"  v_mul_f32 v{acc+i}, s{st0}, v{acc+i}")
    for i in range(8):
        A(f"  v_cvt_pk_bf16_f32 v{qf+i}, v{acc+2*i}, v{acc+2*i+1}")
    A(f"  s_waitcnt vmcnt(0)")
    A(f"  s_barrier")
    kf = R['af']; ks0 = R['big']; ks1 = R['big'] + 8; wf = R['bf']
    for d in range(8):
        for tp in range(4):
            src = wr + d*2 + (tp >> 1)
            if tp & 1: A(f"  v_and_b32 v{wf+d*4+tp}, 0xffff0000, v{src}")
            else:      A(f"  v_lshlrev_b32 v{wf+d*4+tp}, 16, v{src}")
    for j in range(5):
        for d in range(8):
            src = kr + 4*j + (d >> 1)
            if d & 1: A(f"  v_and_b32 v{kf+d}, 0xffff0000, v{src}")
            else:     A(f"  v_lshlrev_b32 v{kf+d}, 16, v{src}")
        for d in range(8):
            if j <= 3:
                tp = 3 - j
                if j == 0: A(f"  v_mul_f32 v{ks0+d}, v{kf+d}, v{wf+d*4+tp}")
                else:      A(f"  v_fma_f32 v{ks0+d}, v{kf+d}, v{wf+d*4+tp}, v{ks0+d}")
            if j >= 1:
                tp = 4 - j
                if j == 1: A(f"  v_mul_f32 v{ks1+d}, v{kf+d}, v{wf+d*4+tp}")
                else:      A(f"  v_fma_f32 v{ks1+d}, v{kf+d}, v{wf+d*4+tp}, v{ks1+d}")
    for (ks, row) in ((ks0, 0), (ks1, 1)):
        for d in range(0, 8, 2):
            A(f"  v_cvt_pk_bf16_f32 v{t3}, v{ks+d}, v{ks+d+1}")
            A(f"  v_lshlrev_b32 v{ks+d}, 16, v{t3}")
            A(f"  v_and_b32 v{ks+d+1}, 0xffff0000, v{t3}")
        for d in range(8):
            src = vr + 4*row + (d >> 1)
            if d & 1: A(f"  v_and_b32 v{kf+d}, 0xffff0000, v{src}")
            else:     A(f"  v_lshlrev_b32 v{kf+d}, 16, v{src}")
        for d in range(8):
            A(f"  v_mul_f32 v{ks+d}, v{ks+d}, v{kf+d}")
    SCR = 0
    A(f"  v_lshrrev_b32 v{t0}, 4, v{tid}")
    A(f"  v_sub_u32 v{t0}, 31, v{t0}")
    A(f"  v_lshrrev_b32 v{t1}, 2, v{t0}")
    A(f"  v_and_b32 v{t2}, 7, v{tid}")
    A(f"  v_xor_b32 v{t1}, v{t1}, v{t2}")
    A(f"  v_lshlrev_b32 v{t1}, 2, v{t1}")
    A(f"  v_and_b32 v{t0}, 3, v{t0}")
    A(f"  v_or_b32 v{t0}, v{t0}, v{t1}")
    A(f"  v_lshlrev_b32 v{t0}, 2, v{t0}")
    A(f"  v_and_b32 v{t1}, 15, v{tid}")
    A(f"  v_lshlrev_b32 v{t1}, 10, v{t1}")
    A(f"  v_add_u32 v{t0}, v{t0}, v{t1}")
    for d in range(8):
        A(f"  v_cvt_pk_bf16_f32 v{kf+d}, v{ks1+d}, v{ks0+d}")
    for d in range(8):
        A(f"  ds_write_b32 v{t0}, v{kf+d} offset:{d*128}")
    A(f"  s_waitcnt lgkmcnt(0)")
    A(f"  s_barrier")
    rd = kr
    A(f"  v_lshrrev_b32 v{t0}, 2, v{tid}")
    A(f"  v_bfe_u32 v{t1}, v{t0}, 3, 3")
    A(f"  v_and_b32 v{t2}, 3, v{tid}")
    A(f"  v_lshlrev_b32 v{t2}, 1, v{t2}")
    A(f"  v_xor_b32 v{t3}, v{t2}, v{t1}")
    A(f"  v_lshlrev_b32 v{t3}, 4, v{t3}")
    A(f"  v_lshlrev_b32 v{kf}, 7, v{t0}")
    A(f"  v_add_u32 v{kf+1}, v{kf}, v{t3}")
    A(f"  v_xor_b32 v{t3}, 16, v{t3}")
    A(f"  v_add_u32 v{kf+2}, v{kf}, v{t3}")
    A(f"  ds_read_b128 {v(rd,4)}, v{kf+1}")
    A(f"  ds_read_b128 {v(rd+4,4)}, v{kf+2}")
    A(f"  s_lshl_b32 s{st0}, s{R['s_hg']}, 7")
    A(f"  v_add_u32 v{t0}, s{st0}, v{t0}")
    A(f"  v_lshlrev_b32 v{t0}, 12, v{t0}")
    A(f"  v_lshlrev_b32 v{t2}, 4, v{t2}")
    A(f"  v_add_u32 v{t0}, v{t0}, v{t2}")
    A(f"  s_lshl_b32 s{st0}, s{R['s_rb']}, 7")
    A(f"  s_sub_u32 s{st0}, {WS_KVT + 1984*2}, s{st0}")
    A(f"  s_waitcnt lgkmcnt(0)")
    A(f"  buffer_store_dwordx4 {v(rd,4)}, v{t0}, s[{SWS}:{SWS+3}], s{st0} offen{SC}")
    A(f"  buffer_store_dwordx4 {v(rd+4,4)}, v{t0}, s[{SWS}:{SWS+3}], s{st0} offen offset:16{SC}")
    publish(A, R, F_KVT)
    ST()
    V.reset(mA)
    for n in ['dmaoff', 'rd0', 'rd1']: R[n] = V()
    R['O'] = V(16, 4); R['L'] = V(4, 4); R['negm'] = V(16, 4); R['S'] = V(32, 4); R['P'] = V(16, 4)
    R['KF'] = V(16, 4); R['VF'] = V(16, 4); R['ones'] = V(4, 4)
    K2.gen_attention(A, R, ST)
    for i in range(16): A(f"  v_mov_b32 v{R['negm']+i}, 0")
    wait_flags(A, R, F_KV, 'all')
    ST()
    class NoST:
        def __call__(self, *a, **k): pass
    K2.attn_loop(A, R, NoST(), "p1")
    ST()
    O = R['O']; L = R['L']; P = R['P']
    A(f"  s_setprio 0")
    A(f"  v_rcp_f32 v{t0}, v{L}")
    A(f"  s_nop 0")
    for i in range(16):
        A(f"  v_mul_f32 v{O+i}, v{t0}, v{O+i}")
    for i in range(8):
        A(f"  v_cvt_pk_bf16_f32 v{P+i}, v{O+2*i}, v{O+2*i+1}")
    A(f"  s_and_b32 s{st0}, s{sw}, 1")
    A(f"  s_lshl_b32 s{st0}, s{st0}, 5")
    A(f"  s_lshl_b32 s{st1}, s{R['s_rb']}, 6")
    A(f"  s_add_u32 s{st0}, s{st0}, s{st1}")
    A(f"  v_and_b32 v{t0}, 31, v{lane}")
    A(f"  v_add_u32 v{t0}, s{st0}, v{t0}")
    A(f"  v_lshlrev_b32 v{t0}, 11, v{t0}")
    A(f"  v_lshrrev_b32 v{t1}, 5, v{lane}")
    A(f"  v_lshlrev_b32 v{t1}, 5, v{t1}")
    A(f"  v_add_u32 v{t0}, v{t0}, v{t1}")
    A(f"  s_lshr_b32 s{st0}, s{sw}, 1")
    A(f"  s_lshl_b32 s{st1}, s{R['s_hg']}, 2")
    A(f"  s_add_u32 s{st0}, s{st0}, s{st1}")
    A(f"  s_lshl_b32 s{st0}, s{st0}, 6")
    A(f"  s_add_u32 s{st0}, s{st0}, {WS_O}")
    A(f"  buffer_store_dwordx4 {v(P,4)}, v{t0}, s[{SWS}:{SWS+3}], s{st0} offen{SC}")
    A(f"  buffer_store_dwordx4 {v(P+4,4)}, v{t0}, s[{SWS}:{SWS+3}], s{st0} offen offset:16{SC}")
    publish(A, R, F_O)
    ST()
    wait_flags(A, R, F_KVT, 'grp32')
    R['conv_free'] = mA
    CONV.gen_conv(A, R, V, NoST(), store_sc=SC, nt=nt('ntf'))
    publish(A, R, F_Z)
    ST()
    V.reset(mA)
    c2 = GemmCfg(with_kv=False, nslots=6)
    R['scx'] = ""
    ZOFF = c2.STAGE * c2.NSLOT
    for n in ['xoff', 'woff0', 'woff1', 'abase', 'aaddr']: R[n] = V()
    R['bbase'] = V(2); R['baddr'] = V(2)
    R['acc'] = V(32, 4); R['af'] = V(16, 4); R['bf'] = V(32, 4)
    qx = V(8, 4); zoff = V(); ooff = V()
    SQ, SO = 20, 24
    srd(A, R['srd_x'], 'ws', 4*MB, off=WS_O)
    srd(A, R['srd_w'], 'wo', 2*MB)
    srd(A, SQ, 'q', 4*MB)
    srd(A, SO, 'out', 4*MB)
    A(f"  s_mov_b32 s{R['s_kst']}, s37")
    gemm3_setup_dma(A, c2, R)
    gemm3_setup_reads(A, c2, R, perm_cols=False)
    A(f"  s_and_b32 s{st0}, s{sw}, 1")
    A(f"  s_lshl_b32 s{st0}, s{st0}, 5")
    A(f"  s_lshl_b32 s{st1}, s{R['s_rb']}, 6")
    A(f"  s_add_u32 s{st0}, s{st0}, s{st1}")
    A(f"  v_and_b32 v{t0}, 31, v{lane}")
    A(f"  v_add_u32 v{t0}, s{st0}, v{t0}")
    A(f"  v_lshlrev_b32 v{t0}, 11, v{t0}")
    A(f"  v_lshrrev_b32 v{t1}, 5, v{lane}")
    A(f"  v_lshlrev_b32 v{t1}, 3, v{t1}")
    A(f"  v_add_u32 v{t0}, v{t0}, v{t1}")
    A(f"  s_lshr_b32 s{st0}, s{sw}, 1")
    A(f"  s_lshl_b32 s{st0}, s{st0}, 6")
    A(f"  s_lshl_b32 s{st1}, s{R['s_hg']}, 8")
    A(f"  s_add_u32 s{st0}, s{st0}, s{st1}")
    A(f"  v_add_u32 v{ooff}, s{st0}, v{t0}")
    for g4 in range(4):
        A(f"  buffer_load_dwordx2 {v(qx+2*g4,2)}, v{ooff}, s[{SQ}:{SQ+3}], 0 offen offset:{16*g4}{nt('ntq')}")
    for i in range(32): A(f"  v_mov_b32 v{R['acc']+i}, 0")
    wait_flags(A, R, F_O, 'rb8')
    A(f"  s_waitcnt vmcnt(0)")
    ST()
    gemm3_prologue_issue(A, c2, R, c2.NSLOT - 1)
    gemm3_main(A, c2, R, pre=0, ST=ST)
    A(f"  s_barrier")
    A.nop(8)
    gemm3_reduce(A, c2, R, 0)
    ST()
    wait_flags(A, R, F_Z, 'grp32')
    A(f"  v_lshrrev_b32 v{t0}, 3, v{lane}")
    A(f"  s_lshl_b32 s{st0}, s{sw}, 4")
    A(f"  s_lshl_b32 s{st1}, s{R['s_hg']}, 7")
    A(f"  s_add_u32 s{st0}, s{st0}, s{st1}")
    A(f"  v_add_u32 v{t0}, s{st0}, v{t0}")
    A(f"  v_lshlrev_b32 v{t0}, 12, v{t0}")
    A(f"  v_and_b32 v{t1}, 7, v{lane}")
    A(f"  v_lshlrev_b32 v{t1}, 4, v{t1}")
    A(f"  v_add_u32 v{zoff}, v{t0}, v{t1}")
    A(f"  s_add_u32 m0, s{R['s_w2048']}, {ZOFF}")
    A(f"  s_lshl_b32 s{st1}, s{R['s_rb']}, 7")
    A(f"  s_add_u32 s{st1}, s{st1}, {WS_ZT}")
    A(f"  buffer_load_dwordx4 v{zoff}, s[{SWS}:{SWS+3}], s{st1} offen lds")
    A(f"  s_add_u32 m0, m0, 1024")
    A(f"  s_add_u32 s{st1}, s{st1}, {8*4096}")
    A(f"  buffer_load_dwordx4 v{zoff}, s[{SWS}:{SWS+3}], s{st1} offen lds")
    acc = R['acc']; zf = R['af']
    A(f"  v_bfe_u32 v{t0}, v{lane}, 2, 2")
    A(f"  v_lshrrev_b32 v{t1}, 5, v{lane}")
    A(f"  v_lshlrev_b32 v{t1}, 2, v{t1}")
    A(f"  v_add_u32 v{t0}, v{t0}, v{t1}")
    A(f"  s_lshr_b32 s{st0}, s{sw}, 1")
    A(f"  s_lshl_b32 s{st0}, s{st0}, 5")
    A(f"  v_add_u32 v{t0}, s{st0}, v{t0}")
    A(f"  v_lshlrev_b32 v{t0}, 7, v{t0}")
    A(f"  v_bfe_u32 v{t1}, v{lane}, 4, 1")
    A(f"  v_lshlrev_b32 v{t1}, 5, v{t1}")
    A(f"  v_add_u32 v{t0}, v{t0}, v{t1}")
    A(f"  v_and_b32 v{t1}, 3, v{lane}")
    A(f"  v_lshlrev_b32 v{t1}, 3, v{t1}")
    A(f"  v_add_u32 v{t0}, v{t0}, v{t1}")
    A(f"  s_and_b32 s{st0}, s{sw}, 1")
    A(f"  s_lshl_b32 s{st0}, s{st0}, 6")
    A(f"  s_add_u32 s{st0}, s{st0}, {ZOFF}")
    A(f"  v_add_u32 v{t0}, s{st0}, v{t0}")
    A(f"  s_waitcnt vmcnt(0)")
    A(f"  s_barrier")
    for g4 in range(4):
        A(f"  ds_read_b64_tr_b16 {v(zf+2*g4,2)}, v{t0} offset:{g4*8*128}")
    gg = R['gval']
    A(f"  v_sub_f32 v{t2}, 1.0, v{gg}")
    A(f"  s_waitcnt lgkmcnt(0)")
    zq = R['bf']
    for g4 in range(4):
        for e in range(4):
            src_z = zf + 2*g4 + (e >> 1); src_q = qx + 2*g4 + (e >> 1)
            if e & 1:
                A(f"  v_and_b32 v{zq}, 0xffff0000, v{src_z}")
                A(f"  v_and_b32 v{zq+1}, 0xffff0000, v{src_q}")
            else:
                A(f"  v_lshlrev_b32 v{zq}, 16, v{src_z}")
                A(f"  v_lshlrev_b32 v{zq+1}, 16, v{src_q}")
            A(f"  v_mul_f32 v{zq}, v{zq}, v{zq+1}")
            A(f"  v_mul_f32 v{zq}, v{zq}, v{gg}")
            r = acc + 4*g4 + e
            A(f"  v_fma_f32 v{r}, v{r}, v{t2}, v{zq}")
        A(f"  v_cvt_pk_bf16_f32 v{zq+2}, v{acc+4*g4}, v{acc+4*g4+1}")
        A(f"  v_cvt_pk_bf16_f32 v{zq+3}, v{acc+4*g4+2}, v{acc+4*g4+3}")
        A(f"  buffer_store_dwordx2 {v(zq+2,2)}, v{ooff}, s[{SO}:{SO+3}], 0 offen offset:{16*g4}{nt('ntout')}")
        A(f"  s_nop 1")
    ST(); ST(real=True)
    ST.flush(sw, SWS, t0, t1)
    A.label(EXIT)
    A("  s_endpgm")
    kernel_desc(A, name, 256, 102, 256)
```

```python
from common import *
from common import MAPPING
from g4 import *
import attn as AT
import conv2 as CV
import os
OPT = set(os.environ.get('FOPT', 'ntprep,ntf').split(','))

WS_FLAG = 17 * MB
F_KV, F_KVT, F_O, F_Z = 0, 1, 2, 3
SPIN_LIMIT = 1 << 20
SC = " sc1"
LDS_FLAG = 163824
def flag_off(kind): return WS_FLAG + kind * 256 * 64
def nt(k): return " nt" if k in OPT else ""

def flag_store(A, R, kind):
    SWS = R['srd_ws']
    L = A.uniq("pub")
    A(f"  s_cmp_lg_u32 s{R['s_wave']}, 0")
    A(f"  s_cbranch_scc1 {L}")
    A(f"  s_lshl_b32 s{R['st0']}, s{R['s_lid']}, 6")
    A(f"  s_add_u32 s{R['st0']}, s{R['st0']}, {flag_off(kind)}")
    A(f"  v_mov_b32 v{R['t0']}, 0")
    A(f"  v_mov_b32 v{R['t1']}, s{R['s_tag']}")
    A(f"  s_mov_b64 exec, 1")
    A(f"  buffer_store_dword v{R['t1']}, v{R['t0']}, s[{SWS}:{SWS+3}], s{R['st0']} offen sc1")
    A(f"  s_mov_b64 exec, -1")
    A.label(L)

def poll(A, R, kind, mode):
    SWS = R['srd_ws']; lane = R['lane']; t0, t1 = R['t0'], R['t1']
    L = A.uniq("wt"); LP = A.uniq("poll")
    A(f"  s_cmp_lg_u32 s{R['s_wave']}, 0")
    A(f"  s_cbranch_scc1 {L}")
    if mode == 'all':
        A(f"  v_lshlrev_b32 v{t0}, 6, v{lane}")
        A(f"  s_mov_b32 s{R['st0']}, {flag_off(kind)}")
    elif mode == 'grp32':
        A(f"  v_and_b32 v{t0}, 31, v{lane}")
        A(f"  v_lshlrev_b32 v{t0}, 6, v{t0}")
        A(f"  s_lshl_b32 s{R['st0']}, s{R['s_hg']}, 11")
        A(f"  s_add_u32 s{R['st0']}, s{R['st0']}, {flag_off(kind)}")
    else:
        A(f"  v_and_b32 v{t0}, 7, v{lane}")
        A(f"  v_lshlrev_b32 v{t0}, 11, v{t0}")
        A(f"  s_lshl_b32 s{R['st0']}, s{R['s_rb']}, 6")
        A(f"  s_add_u32 s{R['st0']}, s{R['st0']}, {flag_off(kind)}")
    A(f"  s_mov_b32 s{R['st1']}, 0")
    A.label(LP)
    n = 4 if mode == 'all' else 1
    fl = R['fl']
    for i in range(n):
        if i == 0:
            A(f"  buffer_load_dword v{fl}, v{t0}, s[{SWS}:{SWS+3}], s{R['st0']} offen sc1")
        else:
            A(f"  v_add_u32 v{t1}, {i*4096}, v{t0}")
            A(f"  buffer_load_dword v{fl+i}, v{t1}, s[{SWS}:{SWS+3}], s{R['st0']} offen sc1")
    A(f"  s_waitcnt vmcnt(0)")
    A(f"  v_xor_b32 v{fl}, s{R['s_tag']}, v{fl}")
    for i in range(1, n):
        A(f"  v_xor_b32 v{fl+i}, s{R['s_tag']}, v{fl+i}")
        A(f"  v_or_b32 v{fl}, v{fl}, v{fl+i}")
    A(f"  v_cmp_ne_u32 vcc, 0, v{fl}")
    A(f"  s_nop 4")
    A(f"  s_cmp_eq_u64 vcc, 0")
    A(f"  s_cbranch_scc1 {L}")
    A(f"  s_add_u32 s{R['st1']}, s{R['st1']}, 1")
    A(f"  s_cmp_lt_u32 s{R['st1']}, {SPIN_LIMIT}")
    A(f"  s_sleep 1")
    A(f"  s_cbranch_scc1 {LP}")
    A.label(L)

def get_tag(A, R):
    SD = R['srd_dbg']; t0, t1 = R['t0'], R['t1']
    L = A.uniq("tg"); LP = A.uniq("tgp")
    A(f"  s_cmp_lg_u32 s{R['s_wave']}, 0")
    A(f"  s_cbranch_scc1 {L}")
    A(f"  s_mov_b32 s{R['st1']}, 0")
    A(f"  v_mov_b32 v{t0}, 0")
    A.label(LP)
    A(f"  buffer_load_dword v{t1}, v{t0}, s[{SD}:{SD+3}], 0 offen sc1")
    A(f"  s_waitcnt vmcnt(0)")
    A(f"  v_readfirstlane_b32 s{R['s_tag']}, v{t1}")
    A(f"  s_nop 4")
    A(f"  s_cmp_lg_u32 s{R['s_tag']}, 0")
    A(f"  s_cbranch_scc1 {L}")
    A(f"  s_add_u32 s{R['st1']}, s{R['st1']}, 1")
    A(f"  s_cmp_lt_u32 s{R['st1']}, {SPIN_LIMIT}")
    A(f"  s_sleep 1")
    A(f"  s_cbranch_scc1 {LP}")
    A.label(L)

def gen(A, name):
    kernel_header(A, name)
    EXIT = f"{name}_exit"
    prologue(A, 256, EXIT)
    ST = Stamps(A, 0)
    ST(real=True); ST()
    V = Alloc(1, 256, "v")
    R = {}
    for n in ['lane', 't0', 't1', 't2', 't3', 'tid', 'gval']: R[n] = V()
    R['fl'] = V(4)
    R['qf'] = V(8, 4)
    R.update(s_wave=4, s_rb=5, s_hg=6, st0=7, st1=3, srd_x=8, srd_w=12, srd_w2=16, srd_ws=28, srd_dbg=96,
             s_tag=100, s_lid=32, s_w1024=33, s_w2048=34, s_kx=35, s_kw=36, s_k0=37, s_kr=101)
    SK, SV, SWS, SG, SSH = 20, 24, 28, 20, 60
    lane = R['lane']; t0, t1, t2, t3 = R['t0'], R['t1'], R['t2'], R['t3']; tid = R['tid']
    st0, st1 = R['st0'], R['st1']; sw = R['s_wave']
    vm = VM()
    A(f"  v_mov_b32 v{tid}, v0")
    wave_id(A, sw, lane, t0)
    wg_map(A, R['s_rb'], R['s_hg'], st0)
    A(f"  s_lshl_b32 s32, s{R['s_hg']}, 5")
    A(f"  s_add_u32 s32, s32, s{R['s_rb']}")
    A(f"  s_lshl_b32 s{R['s_w1024']}, s{sw}, 10")
    A(f"  s_lshl_b32 s{R['s_w2048']}, s{sw}, 11")
    k0 = R['s_k0']
    if MAPPING == 0:
        A(f"  s_and_b32 s{k0}, s{R['s_rb']}, 3")
        A(f"  s_lshl_b32 s{k0}, s{k0}, 1")
        A(f"  s_add_u32 s{k0}, s{k0}, s{R['s_hg']}")
    else:
        A(f"  s_and_b32 s{k0}, s{R['s_hg']}, 3")
        A(f"  s_lshl_b32 s{k0}, s{k0}, 1")
        A(f"  s_add_u32 s{k0}, s{k0}, s{R['s_rb']}")
    A(f"  s_lshl_b32 s{k0}, s{k0}, 1")
    A(f"  s_and_b32 s{k0}, s{k0}, 15")
    A(f"  s_mov_b32 s{R['s_kx']}, s{k0}")
    A(f"  s_mov_b32 s{R['s_kw']}, s{k0}")
    A(f"  s_mov_b32 s{R['s_kr']}, s{k0}")
    mA = V.mark()
    c = G4([24576*i for i in range(5)], [24576*i + 8192 for i in range(5)], with_kv=True, w2_off=122880, g4_off=139264)
    R['scx'] = nt('ntx'); R['scw'] = nt('ntw')
    for n in ['xoff', 'woff0', 'woff1', 'abase', 'aaddr', 'x16base', 'x16addr', 'w2base', 'w2inc', 'w2mul']: R[n] = V()
    R['w2addr'] = V(2); R['bbase'] = V(2); R['baddr'] = V(2)
    R['acc'] = V(32, 4); R['acc16'] = V(4, 4)
    R['af'] = V(16, 4); R['bf'] = V(32, 4); R['x16f'] = V(8, 4); R['w2f'] = V(8, 4)
    kr = V(12); vr = V(8); wr = V(4, 4); gw = V(); po = V(); ks = V(16)
    setup_dma(A, c, R)
    A("  s_waitcnt lgkmcnt(0)")
    srd(A, R['srd_x'], 'q', 4*MB)
    srd(A, R['srd_w'], 'wq', 2*MB)
    emit_x(A, c, R, vm, 0); emit_w(A, c, R, vm, 0)
    srd(A, SWS, 'ws', WS_SIZE)
    A(f"  s_cmp_lt_u32 s{R['s_hg']}, 4")
    A(f"  s_cselect_b32 s16, s{ptr('wk')}, s{ptr('wv')}")
    A(f"  s_cselect_b32 s17, s{ptr('wk')+1}, s{ptr('wv')+1}")
    A(f"  s_mov_b32 s18, 65536")
    A(f"  s_mov_b32 s19, 0x20000")
    srd(A, SG, 'gate', 2048)
    A(f"  v_lshlrev_b32 v{t0}, 2, v{tid}")
    A(f"  buffer_load_dword v{gw}, v{t0}, s[{SG}:{SG+3}], 0 offen"); vm.issue("gate")
    A(f"  s_lshl_b32 s{st0}, s{sw}, 7")
    A(f"  v_add_u32 v{t0}, s{st0}, v{lane}")
    A(f"  v_lshlrev_b32 v{t0}, 6, v{t0}")
    A(f"  s_and_b32 s{st1}, s{R['s_hg']}, 3")
    A(f"  s_lshl_b32 s{st1}, s{st1}, 4")
    A(f"  s_add_u32 m0, s{R['s_w2048']}, {c.W2}")
    A(f"  v_add_u32 v{t0}, s{st1}, v{t0}")
    A(f"  buffer_load_dwordx4 v{t0}, s[16:19], 0 offen lds"); vm.issue("KVW")
    A(f"  s_add_u32 m0, m0, 1024")
    A(f"  s_movk_i32 s{st1}, 4096")
    A(f"  buffer_load_dwordx4 v{t0}, s[16:19], s{st1} offen lds"); vm.issue("KVW")
    for st in range(1, c.NS - 1):
        emit_x(A, c, R, vm, st); emit_w(A, c, R, vm, st)
    ST()
    srd(A, R['srd_dbg'], 'dbg', 256)
    Ln = A.uniq("nonce")
    A(f"  s_or_b32 s{st0}, s2, s{sw}")
    A(f"  s_cmp_lg_u32 s{st0}, 0")
    A(f"  s_cbranch_scc1 {Ln}")
    A(f"  s_memrealtime s[38:39]")
    A(f"  s_waitcnt lgkmcnt(0)")
    A(f"  s_or_b32 s38, s38, 1")
    A(f"  v_mov_b32 v{t1}, s38")
    A(f"  v_mov_b32 v{t0}, 0")
    A(f"  s_mov_b64 exec, 1")
    A(f"  buffer_store_dword v{t1}, v{t0}, s[{R['srd_dbg']}:{R['srd_dbg']+3}], 0 offen sc1")
    A(f"  s_mov_b64 exec, -1")
    A.label(Ln)
    setup_reads(A, c, R, perm_cols=True)
    for i in range(32): A(f"  v_mov_b32 v{R['acc']+i}, 0")
    for i in range(4): A(f"  v_mov_b32 v{R['acc16']+i}, 0")
    A(f"  v_mov_b32 v{t0}, {LDS_FLAG}")
    A(f"  v_mov_b32 v{t1}, 0")
    A(f"  ds_write_b32 v{t0}, v{t1}")
    vm.wait(A, ["gate", "KVW"])
    A(f"  v_lshlrev_b32 v{t0}, 4, v{tid}")
    A(f"  v_add_u32 v{t0}, {c.G4}, v{t0}")
    A(f"  v_and_b32 v{t1}, 0xffff, v{gw}")
    A(f"  v_lshrrev_b32 v{t2}, 16, v{gw}")
    A(f"  ds_write_b32 v{t0}, v{t1}")
    A(f"  ds_write_b32 v{t0}, v{t2} offset:8")
    A(f"  s_waitcnt lgkmcnt(0)")
    def prep_hook(st):
        G = []
        if st == 12:
            B = Asm()
            srd(B, SK, 'k', 4*MB); srd(B, SV, 'v', 4*MB); srd(B, SSH, 'shift', 8192)
            B(f"  s_lshl_b32 s{st0}, s{R['s_rb']}, 6")
            B(f"  s_lshl_b32 s{st1}, s{sw}, 3")
            B(f"  s_add_u32 s{st0}, s{st0}, s{st1}")
            B(f"  s_lshl_b32 s{st0}, s{st0}, 11")
            B(f"  s_lshl_b32 s{st1}, s{R['s_hg']}, 8")
            B(f"  s_add_u32 s{st0}, s{st0}, s{st1}")
            B(f"  v_lshlrev_b32 v{t2}, 2, v{lane}")
            B(f"  v_add_u32 v{po}, s{st0}, v{t2}")
            B(f"  v_lshlrev_b32 v{t2}, 2, v{t2}")
            B(f"  s_lshl_b32 s{st1}, s{R['s_hg']}, 10")
            B(f"  buffer_load_dwordx4 {v(wr,4)}, v{t2}, s[{SSH}:{SSH+3}], s{st1} offen")
            G.append((B.lines, ["prep"]))
            L = []
            for j in range(3):
                L.append(f"  v_add_u32 v{t2}, {(j-3)*2048 & 0xffffffff}, v{po}")
                L.append(f"  buffer_load_dword v{kr+j}, v{t2}, s[{SK}:{SK+3}], 0 offen{nt('ntprep')}")
            G.append((L, ["prep"]*3))
            L = [f"  buffer_load_dword v{kr+3+j}, v{po}, s[{SK}:{SK+3}], 0 offen offset:{j*2048 if j < 2 else 0}{nt('ntprep')}" for j in range(2)]
            G.append((L, ["prep"]*2))
        elif st == 13 or st == 14:
            for grp in range(3):
                L = []; tags = []
                for j in range(3):
                    idx = (st - 13) * 9 + grp * 3 + j
                    if idx < 6:
                        r = 2 + idx
                        L.append(f"  s_movk_i32 s{st1}, {r*2048}")
                        L.append(f"  buffer_load_dword v{kr+3+r}, v{po}, s[{SK}:{SK+3}], s{st1} offen{nt('ntprep')}"); tags.append("prep")
                    elif idx < 14:
                        r = idx - 6
                        L.append(f"  s_movk_i32 s{st1}, {r*2048}")
                        L.append(f"  buffer_load_dword v{vr+r}, v{po}, s[{SV}:{SV+3}], s{st1} offen{nt('ntprep')}"); tags.append("prep")
                if L: G.append((L, tags))
        return G
    gemm_main(A, c, R, vm, tail_hook=prep_hook, ST=ST)
    ST()
    a16 = R['acc16']
    A(f"  s_barrier")
    A(f"  s_and_b32 s{st0}, s{sw}, 3")
    A(f"  s_lshl_b32 s{st0}, s{st0}, 10")
    A(f"  s_lshr_b32 s{st1}, s{sw}, 2")
    A(f"  s_lshl_b32 s{st1}, s{st1}, 12")
    A(f"  s_add_u32 s{st0}, s{st0}, s{st1}")
    A(f"  v_lshrrev_b32 v{t0}, 4, v{lane}")
    A(f"  v_lshlrev_b32 v{t0}, 8, v{t0}")
    A(f"  v_and_b32 v{t1}, 15, v{lane}")
    A(f"  v_lshl_add_u32 v{t0}, v{t1}, 2, v{t0}")
    A(f"  v_add_u32 v{t0}, s{st0}, v{t0}")
    A.nop(4)
    for r in range(4): A(f"  ds_write_b32 v{t0}, v{a16+r} offset:{r*64}")
    acc = R['acc']; QS = 16384
    L1 = A.uniq("gr"); L2 = A.uniq("gr")
    qx_addr = R['aaddr']
    A(f"  v_lshlrev_b32 v{t0}, 4, v{lane}")
    A(f"  s_lshl_b32 s{st0}, s{sw}, 12")
    A(f"  s_add_u32 s{st0}, s{st0}, {QS}")
    A(f"  v_add_u32 v{qx_addr}, s{st0}, v{t0}")
    A(f"  s_bitcmp1_b32 s{sw}, 0")
    A(f"  s_cbranch_scc0 {L1}")
    for i in range(4): A(f"  ds_write_b128 v{qx_addr}, {v(acc+4*i,4)} offset:{1024*i}")
    A(f"  s_nop 1")
    for i in range(16): A(f"  v_mov_b32 v{acc+i}, v{acc+16+i}")
    A(f"  s_branch {L2}")
    A.label(L1)
    for i in range(4): A(f"  ds_write_b128 v{qx_addr}, {v(acc+16+4*i,4)} offset:{1024*i}")
    A.label(L2)
    A(f"  v_xor_b32 v{qx_addr}, 4096, v{qx_addr}")
    A(f"  s_waitcnt lgkmcnt(0)")
    A(f"  s_barrier")
    get_tag(A, R)
    L_notw0 = A.uniq("w0"); L_isV = A.uniq("isv"); L_st = A.uniq("kvst")
    x = R['af']; y = R['bf'] + 16
    A(f"  s_cmp_lg_u32 s{sw}, 0")
    A(f"  s_cbranch_scc1 {L_notw0}")
    A(f"  s_cmp_ge_u32 s{R['s_hg']}, 4")
    A(f"  s_cbranch_scc1 {L_isV}")
    A(f"  v_lshlrev_b32 v{t0}, 6, v{lane}")
    A(f"  ds_read_b128 {v(x,4)}, v{t0}")
    A(f"  ds_read_b128 {v(x+4,4)}, v{t0} offset:16")
    A(f"  ds_read_b128 {v(y,4)}, v{t0} offset:4096")
    A(f"  ds_read_b128 {v(y+4,4)}, v{t0} offset:4112")
    A(f"  v_and_b32 v{t0}, 0x13, v{lane}")
    A(f"  v_bfe_u32 v{t1}, v{lane}, 2, 1")
    A(f"  v_lshl_or_b32 v{t0}, v{t1}, 3, v{t0}")
    A(f"  v_bfe_u32 v{t1}, v{lane}, 3, 1")
    A(f"  v_lshl_or_b32 v{t0}, v{t1}, 2, v{t0}")
    A(f"  v_lshlrev_b32 v{t0}, 4, v{t0}")
    A(f"  v_lshrrev_b32 v{t1}, 5, v{lane}")
    A(f"  v_lshl_add_u32 v{t0}, v{t1}, 12, v{t0}")
    A(f"  s_lshl_b32 s{st0}, s{R['s_rb']}, 13")
    A(f"  s_lshl_b32 s{st1}, s{R['s_hg']}, 9")
    A(f"  s_add_u32 s{st0}, s{st0}, s{st1}")
    A(f"  s_add_u32 s{st0}, s{st0}, {WS_KVF}")
    A(f"  s_branch {L_st}")
    A.label(L_isV)
    A(f"  v_lshrrev_b32 v{t0}, 3, v{lane}")
    A(f"  v_lshlrev_b32 v{t0}, 9, v{t0}")
    A(f"  v_and_b32 v{t1}, 7, v{lane}")
    A(f"  v_lshl_add_u32 v{t0}, v{t1}, 2, v{t0}")
    for i in range(8): A(f"  ds_read_b32 v{x+i}, v{t0} offset:{i*64}")
    A(f"  s_waitcnt lgkmcnt(0)")
    for i in range(8): A(f"  ds_read_b32 v{y+i}, v{t0} offset:{4096+i*64}")
    A(f"  s_sub_u32 s{st0}, s{R['s_hg']}, 4")
    A(f"  s_lshl_b32 s{st0}, s{st0}, 3")
    A(f"  v_and_b32 v{t0}, 7, v{lane}")
    A(f"  v_add_u32 v{t0}, s{st0}, v{t0}")
    A(f"  v_and_b32 v{t1}, 3, v{t0}")
    A(f"  v_bfe_u32 v{t2}, v{t0}, 2, 2")
    A(f"  v_lshl_or_b32 v{t1}, v{t2}, 3, v{t1}")
    A(f"  v_bfe_u32 v{t2}, v{t0}, 4, 1")
    A(f"  v_lshl_or_b32 v{t1}, v{t2}, 2, v{t1}")
    A(f"  v_lshlrev_b32 v{t1}, 4, v{t1}")
    A(f"  v_lshrrev_b32 v{t0}, 3, v{lane}")
    A(f"  v_and_b32 v{t2}, 3, v{t0}")
    A(f"  v_lshl_add_u32 v{t1}, v{t2}, 9, v{t1}")
    A(f"  v_lshrrev_b32 v{t0}, 2, v{t0}")
    A(f"  v_lshl_add_u32 v{t0}, v{t0}, 12, v{t1}")
    A(f"  s_lshl_b32 s{st0}, s{R['s_rb']}, 13")
    A(f"  s_add_u32 s{st0}, s{st0}, {WS_KVF + 2048}")
    A.label(L_st)
    A(f"  s_waitcnt lgkmcnt(0)")
    for i in range(8): A(f"  v_add_f32 v{x+i}, v{x+i}, v{y+i}")
    for i in range(4): A(f"  v_cvt_pk_bf16_f32 v{y+i}, v{x+2*i}, v{x+2*i+1}")
    A(f"  buffer_store_dwordx4 {v(y,4)}, v{t0}, s[{SWS}:{SWS+3}], s{st0} offen{SC}")
    A(f"  s_waitcnt vmcnt(0)")
    A.label(L_notw0)
    flag_store(A, R, F_KV)
    ST()
    A(f"  s_and_b32 s{st0}, s{sw}, 1")
    A(f"  s_lshl_b32 s{st0}, s{st0}, 11")
    A(f"  v_and_b32 v{t0}, 31, v{lane}")
    A(f"  v_lshlrev_b32 v{t0}, 6, v{t0}")
    A(f"  v_add_u32 v{t0}, s{st0}, v{t0}")
    A(f"  ds_read_b32 v{t1}, v{t0} offset:32")
    A(f"  ds_read_b32 v{t2}, v{t0} offset:{4096+32}")
    tmp = R['bf']
    for i in range(4): A(f"  ds_read_b128 {v(tmp+4*i,4)}, v{qx_addr} offset:{1024*i}")
    g = R['gval']
    A(f"  s_waitcnt lgkmcnt(4)")
    A(f"  v_add_f32 v{g}, v{t1}, v{t2}")
    A(f"  v_cvt_pk_bf16_f32 v{g}, v{g}, v{g}")
    A(f"  v_lshlrev_b32 v{g}, 16, v{g}")
    A(f"  v_mul_f32 v{g}, {f32bits(-1.4426950408889634)}, v{g}")
    A(f"  v_exp_f32 v{g}, v{g}")
    A(f"  s_mov_b32 s{st0}, {f32bits(QSCALE)}")
    A(f"  v_add_f32 v{g}, 1.0, v{g}")
    A(f"  v_rcp_f32 v{g}, v{g}")
    A(f"  s_waitcnt lgkmcnt(0)")
    qf = R['qf']
    for i in range(16): A(f"  v_add_f32 v{acc+i}, v{acc+i}, v{tmp+i}")
    A(f"  v_cvt_pk_bf16_f32 v{g}, v{g}, v{g}")
    A(f"  v_lshlrev_b32 v{g}, 16, v{g}")
    for i in range(16): A(f"  v_mul_f32 v{acc+i}, s{st0}, v{acc+i}")
    for i in range(8): A(f"  v_cvt_pk_bf16_f32 v{qf+i}, v{acc+2*i}, v{acc+2*i+1}")
    vm.wait(A, "prep")
    wf = R['bf']; kf = R['bf'] + 8
    for d in range(2):
        for tp in range(4):
            src = wr + d*2 + (tp >> 1)
            if tp & 1: A(f"  v_and_b32 v{wf+d*4+tp}, 0xffff0000, v{src}")
            else:      A(f"  v_lshlrev_b32 v{wf+d*4+tp}, 16, v{src}")
    for j in range(11):
        A(f"  v_lshlrev_b32 v{kf+2*j}, 16, v{kr+j}")
        A(f"  v_and_b32 v{kf+2*j+1}, 0xffff0000, v{kr+j}")
    for r in range(8):
        for d in range(2):
            o = ks + 2*r + d
            A(f"  v_mul_f32 v{o}, v{kf+2*(r+3)+d}, v{wf+d*4+0}")
            for tp in range(1, 4):
                A(f"  v_fma_f32 v{o}, v{kf+2*(r+3-tp)+d}, v{wf+d*4+tp}, v{o}")
    for r in range(8):
        A(f"  v_lshlrev_b32 v{kf+2*r}, 16, v{vr+r}")
        A(f"  v_and_b32 v{kf+2*r+1}, 0xffff0000, v{vr+r}")
    for r in range(8):
        for d in range(2):
            A(f"  v_mul_f32 v{ks+2*r+d}, v{ks+2*r+d}, v{kf+2*r+d}")
    pk = R['af']
    for d in range(2):
        for j in range(4):
            A(f"  v_cvt_pk_bf16_f32 v{pk+4*d+j}, v{ks+2*(7-2*j)+d}, v{ks+2*(6-2*j)+d}")
    PS = 49152
    A(f"  s_sub_u32 s{st0}, 7, s{sw}")
    A(f"  v_and_b32 v{t0}, 7, v{lane}")
    A(f"  v_xor_b32 v{t0}, s{st0}, v{t0}")
    A(f"  v_lshlrev_b32 v{t0}, 4, v{t0}")
    A(f"  v_lshl_add_u32 v{t0}, v{lane}, 8, v{t0}")
    A(f"  ds_write_b128 v{t0}, {v(pk,4)} offset:{PS}")
    A(f"  ds_write_b128 v{t0}, {v(pk+4,4)} offset:{PS+128}")
    A(f"  s_waitcnt lgkmcnt(0)")
    A(f"  s_barrier")
    rd = R['bf']
    A(f"  v_lshrrev_b32 v{t0}, 2, v{tid}")
    A(f"  v_bfe_u32 v{t1}, v{t0}, 1, 3")
    A(f"  v_and_b32 v{t2}, 3, v{tid}")
    A(f"  v_lshlrev_b32 v{t2}, 1, v{t2}")
    A(f"  v_xor_b32 v{t3}, v{t2}, v{t1}")
    A(f"  v_lshlrev_b32 v{t3}, 4, v{t3}")
    A(f"  v_lshl_add_u32 v{t3}, v{t0}, 7, v{t3}")
    A(f"  v_xor_b32 v{t1}, 16, v{t3}")
    A(f"  ds_read_b128 {v(rd,4)}, v{t3} offset:{PS}")
    A(f"  ds_read_b128 {v(rd+4,4)}, v{t1} offset:{PS}")
    A(f"  s_lshl_b32 s{st0}, s{R['s_hg']}, 7")
    A(f"  v_add_u32 v{t0}, s{st0}, v{t0}")
    A(f"  v_lshlrev_b32 v{t0}, 12, v{t0}")
    A(f"  v_lshl_add_u32 v{t0}, v{t2}, 4, v{t0}")
    A(f"  s_lshl_b32 s{st0}, s{R['s_rb']}, 7")
    A(f"  s_sub_u32 s{st0}, {WS_KVT + 1984*2}, s{st0}")
    A(f"  s_waitcnt lgkmcnt(0)")
    A(f"  buffer_store_dwordx4 {v(rd,4)}, v{t0}, s[{SWS}:{SWS+3}], s{st0} offen{SC}")
    A(f"  buffer_store_dwordx4 {v(rd+4,4)}, v{t0}, s[{SWS}:{SWS+3}], s{st0} offen offset:16{SC}")
    ST()
    V.reset(mA)
    for n in ['dmaoff', 'rd0', 'rd1']: R[n] = V()
    R['O'] = V(16, 4); R['L'] = V(4, 4); R['negm'] = V(16, 4); R['S'] = V(32, 4); R['P'] = V(16, 4)
    R['KF'] = V(16, 4); R['VF'] = V(16, 4); R['ones'] = V(4, 4)
    R['woff0'] = V(); R['woff1'] = V(); R['xoff'] = V()
    AT.ones_setup(A, R)
    for i in range(16): A(f"  v_mov_b32 v{R['negm']+i}, 0")
    C = CV.conv_setup(A, R, V)
    c2 = G4([65536 + 8192*i for i in range(5)], [143360, 32768, 49152, 0, 16384])
    setup_dma(A, c2, R)
    A(f"  s_mov_b32 s{R['s_kw']}, s{k0}")
    A(f"  s_mov_b32 s{R['s_kx']}, s{k0}")
    R['srd_w'] = 96
    srd(A, 96, 'wo', 2*MB)
    R['scw'] = nt('ntwo')
    poll(A, R, F_KV, 'all')
    A(f"  s_barrier")
    ST()
    A(f"  s_mov_b32 s101, 0")
    ATT = A.uniq("attstart")
    A.label(ATT)
    vmA = VM()
    def hook_c0(s_c):
        Lx = A.uniq("h0")
        A(f"  s_cmp_lg_u32 s{s_c}, 0")
        A(f"  s_cbranch_scc1 {Lx}")
        flag_store(A, R, F_KVT)
        A.label(Lx)
    def hook_c5(s_c):
        Lx = A.uniq("h5")
        A(f"  s_cmp_lg_u32 s{s_c}, 5")
        A(f"  s_cbranch_scc1 {Lx}")
        poll(A, R, F_KVT, 'grp32')
        A.label(Lx)
    groups = CV.conv_prefetch_groups(R, C, nt('ntf'))
    a, b = w_issue(c2, R, 0)
    groups = groups + [(a, ["W0"]), (b, ["W0"])]
    for g_ in groups:
        for t in g_[1]: vmA.issue(t)
    AT.attn_pass(A, R, hook_c0, hook_c5, [g_[0] for g_ in groups])
    ST()
    L = R['L']; O = R['O']; P = R['P']
    A(f"  s_mov_b32 s{st0}, {f32bits(2.0**-64)}")
    A(f"  s_mov_b32 s{st1}, {f32bits(2.0**64)}")
    A(f"  v_cmp_nge_f32 vcc, v{L}, s{st0}")
    A(f"  v_cmp_nle_f32 s[62:63], v{L}, s{st1}")
    A(f"  s_nop 1")
    A(f"  s_or_b64 vcc, vcc, s[62:63]")
    Lok = A.uniq("lok")
    A(f"  s_cmp_eq_u64 vcc, 0")
    A(f"  s_cbranch_scc1 {Lok}")
    A(f"  v_mov_b32 v{t0}, {LDS_FLAG}")
    A(f"  v_mov_b32 v{t1}, 1")
    A(f"  ds_write_b32 v{t0}, v{t1}")
    A(f"  s_waitcnt lgkmcnt(0)")
    A.label(Lok)
    A(f"  s_barrier")
    A(f"  v_mov_b32 v{t0}, {LDS_FLAG}")
    A(f"  ds_read_b32 v{t1}, v{t0}")
    A(f"  v_rcp_f32 v{t2}, v{L}")
    A(f"  s_waitcnt lgkmcnt(0)")
    A(f"  v_readfirstlane_b32 s{st0}, v{t1}")
    A(f"  s_nop 4")
    Lnf = A.uniq("nofb")
    A(f"  s_cmp_eq_u32 s{st0}, 0")
    A(f"  s_cbranch_scc1 {Lnf}")
    A(f"  s_cmp_lg_u32 s101, 0")
    A(f"  s_cbranch_scc1 {Lnf}")
    A(f"  s_mov_b32 s101, 1")
    A(f"  s_waitcnt vmcnt(0)")
    AT.max_pass(A, R)
    A(f"  s_mov_b32 s{R['s_kw']}, s{k0}")
    A(f"  s_branch {ATT}")
    A.label(Lnf)
    vm = vmA
    emit_w(A, c2, R, vm, 1); emit_w(A, c2, R, vm, 2)
    for i in range(16): A(f"  v_mul_f32 v{O+i}, v{t2}, v{O+i}")
    for i in range(8): A(f"  v_cvt_pk_bf16_f32 v{P+i}, v{O+2*i}, v{O+2*i+1}")
    A(f"  s_and_b32 s{st0}, s{sw}, 1")
    A(f"  s_lshl_b32 s{st0}, s{st0}, 5")
    A(f"  s_lshl_b32 s{st1}, s{R['s_rb']}, 6")
    A(f"  s_add_u32 s{st0}, s{st0}, s{st1}")
    A(f"  v_and_b32 v{t0}, 31, v{lane}")
    A(f"  v_add_u32 v{t0}, s{st0}, v{t0}")
    A(f"  v_lshlrev_b32 v{t0}, 11, v{t0}")
    A(f"  v_lshrrev_b32 v{t1}, 5, v{lane}")
    A(f"  v_lshl_add_u32 v{t0}, v{t1}, 5, v{t0}")
    A(f"  s_lshr_b32 s{st0}, s{sw}, 1")
    A(f"  s_lshl_b32 s{st1}, s{R['s_hg']}, 2")
    A(f"  s_add_u32 s{st0}, s{st0}, s{st1}")
    A(f"  s_lshl_b32 s{st0}, s{st0}, 6")
    A(f"  s_add_u32 s{st0}, s{st0}, {WS_O}")
    mC = V.mark()
    CV.conv_build(A, R, V, C, vm)
    A(f"  buffer_store_dwordx4 {v(P,4)}, v{t0}, s[{SWS}:{SWS+3}], s{st0} offen{SC}"); vm.issue("Ost")
    A(f"  buffer_store_dwordx4 {v(P+4,4)}, v{t0}, s[{SWS}:{SWS+3}], s{st0} offen offset:16{SC}"); vm.issue("Ost")
    ST()
    keep = [R['woff0'], R['woff1'], R['xoff']]
    V.reset(mA)
    save = V(3)
    for i, r in enumerate(keep): A(f"  v_mov_b32 v{save+i}, v{r}")
    R['woff0'], R['woff1'], R['xoff'] = save, save + 1, save + 2
    def mid():
        vm.drain(A)
        A(f"  s_barrier")
        flag_store(A, R, F_O)
    acc, AF, BF = CV.conv_main(A, R, V, mid_hook=mid)
    ST()
    CV.conv_finish(A, R, acc, AF, BF, 65536, vm, SC)
    ST()
    V.reset(save + 3)
    for n in ['abase', 'aaddr']: R[n] = V()
    R['bbase'] = V(2); R['baddr'] = V(2)
    R['acc'] = V(32, 4); R['af'] = V(16, 4); R['bf'] = V(32, 4)
    qx = V(8, 4); zoff = V(); ooff = V()
    SQ, SO = 20, 24
    emit_w(A, c2, R, vm, 3)
    srd(A, R['srd_x'], 'ws', 4*MB, off=WS_O)
    srd(A, SQ, 'q', 4*MB)
    srd(A, SO, 'out', 4*MB)
    R['scx'] = ""
    setup_reads(A, c2, R, perm_cols=False)
    for i in range(32): A(f"  v_mov_b32 v{R['acc']+i}, 0")
    A(f"  s_and_b32 s{st0}, s{sw}, 1")
    A(f"  s_lshl_b32 s{st0}, s{st0}, 5")
    A(f"  s_lshl_b32 s{st1}, s{R['s_rb']}, 6")
    A(f"  s_add_u32 s{st0}, s{st0}, s{st1}")
    A(f"  v_and_b32 v{t0}, 31, v{lane}")
    A(f"  v_add_u32 v{t0}, s{st0}, v{t0}")
    A(f"  v_lshlrev_b32 v{t0}, 11, v{t0}")
    A(f"  v_lshrrev_b32 v{t1}, 5, v{lane}")
    A(f"  v_lshl_add_u32 v{t0}, v{t1}, 3, v{t0}")
    A(f"  s_lshr_b32 s{st0}, s{sw}, 1")
    A(f"  s_lshl_b32 s{st0}, s{st0}, 6")
    A(f"  s_lshl_b32 s{st1}, s{R['s_hg']}, 8")
    A(f"  s_add_u32 s{st0}, s{st0}, s{st1}")
    A(f"  v_add_u32 v{ooff}, s{st0}, v{t0}")
    ZOFF = 106496
    A(f"  v_lshrrev_b32 v{t0}, 3, v{lane}")
    A(f"  s_lshl_b32 s{st0}, s{sw}, 4")
    A(f"  s_lshl_b32 s{st1}, s{R['s_hg']}, 7")
    A(f"  s_add_u32 s{st0}, s{st0}, s{st1}")
    A(f"  v_add_u32 v{t0}, s{st0}, v{t0}")
    A(f"  v_lshlrev_b32 v{t0}, 12, v{t0}")
    A(f"  v_and_b32 v{t1}, 7, v{lane}")
    A(f"  v_lshl_add_u32 v{zoff}, v{t1}, 4, v{t0}")
    poll(A, R, F_O, 'rb8')
    A(f"  s_barrier")
    ST()
    for st in range(4): emit_x(A, c2, R, vm, st)
    zpub = [False]
    def tailB(st):
        G = []
        if st == 12:
            L = [f"  buffer_load_dwordx2 {v(qx+2*g4,2)}, v{ooff}, s[{SQ}:{SQ+3}], 0 offen offset:{16*g4}{nt('ntq')}" for g4 in range(4)]
            G.append((L, ["qx"]*4))
        if st == 13:
            B = Asm(); B._lbl = A._lbl + 1000
            poll(B, R, F_Z, 'grp32')
            A._lbl = B._lbl
            G.append((B.lines, []))
        if st == 14:
            L = [f"  s_add_u32 m0, s{R['s_w2048']}, {ZOFF}",
                 f"  s_lshl_b32 s{st1}, s{R['s_rb']}, 7",
                 f"  s_add_u32 s{st1}, s{st1}, {WS_ZT}",
                 f"  buffer_load_dwordx4 v{zoff}, s[{SWS}:{SWS+3}], s{st1} offen lds",
                 f"  s_add_u32 m0, m0, 1024",
                 f"  s_add_u32 s{st1}, s{st1}, {8*4096}",
                 f"  buffer_load_dwordx4 v{zoff}, s[{SWS}:{SWS+3}], s{st1} offen lds"]
            G.append((L, ["z", "z"]))
        return G
    lb = len(A.lines)
    gemm_main(A, c2, R, vm, tail_hook=tailB, ST=ST)
    idx = next(i for i in range(lb, len(A.lines)) if A.lines[i].strip() == "s_barrier")
    B = Asm(); B._lbl = A._lbl + 2000
    flag_store(B, R, F_Z)
    A.lines[idx+1:idx+1] = B.lines
    A._lbl = B._lbl
    ST()
    vm.drain(A)
    A(f"  s_barrier")
    gemm_reduce(A, R, 0)
    acc = R['acc']; zf = R['af']
    A(f"  v_bfe_u32 v{t0}, v{lane}, 2, 2")
    A(f"  v_lshrrev_b32 v{t1}, 5, v{lane}")
    A(f"  v_lshl_add_u32 v{t0}, v{t1}, 2, v{t0}")
    A(f"  s_lshr_b32 s{st0}, s{sw}, 1")
    A(f"  s_lshl_b32 s{st0}, s{st0}, 5")
    A(f"  v_add_u32 v{t0}, s{st0}, v{t0}")
    A(f"  v_lshlrev_b32 v{t0}, 7, v{t0}")
    A(f"  v_bfe_u32 v{t1}, v{lane}, 4, 1")
    A(f"  v_lshl_add_u32 v{t0}, v{t1}, 5, v{t0}")
    A(f"  v_and_b32 v{t1}, 3, v{lane}")
    A(f"  v_lshl_add_u32 v{t0}, v{t1}, 3, v{t0}")
    A(f"  s_and_b32 s{st0}, s{sw}, 1")
    A(f"  s_lshl_b32 s{st0}, s{st0}, 6")
    A(f"  s_add_u32 s{st0}, s{st0}, {ZOFF}")
    A(f"  v_add_u32 v{t0}, s{st0}, v{t0}")
    for g4 in range(4): A(f"  ds_read_b64_tr_b16 {v(zf+2*g4,2)}, v{t0} offset:{g4*8*128}")
    gg = R['gval']
    A(f"  v_sub_f32 v{t2}, 1.0, v{gg}")
    zq = R['bf'] + 16
    for g4 in range(4):
        for e in range(4):
            src_q = qx + 2*g4 + (e >> 1)
            d = zq + 4*g4 + e
            if e & 1: A(f"  v_and_b32 v{d}, 0xffff0000, v{src_q}")
            else:     A(f"  v_lshlrev_b32 v{d}, 16, v{src_q}")
    for i in range(16): A(f"  v_mul_f32 v{zq+i}, v{zq+i}, v{gg}")
    for i in range(16): A(f"  v_mul_f32 v{acc+i}, v{acc+i}, v{t2}")
    A(f"  s_waitcnt lgkmcnt(0)")
    zu = R['bf']
    for g4 in range(4):
        for e in range(4):
            src_z = zf + 2*g4 + (e >> 1)
            d = zu + 4*g4 + e
            if e & 1: A(f"  v_and_b32 v{d}, 0xffff0000, v{src_z}")
            else:     A(f"  v_lshlrev_b32 v{d}, 16, v{src_z}")
    for i in range(16): A(f"  v_fma_f32 v{acc+i}, v{zu+i}, v{zq+i}, v{acc+i}")
    pk = R['af'] + 8
    for g4 in range(4):
        A(f"  v_cvt_pk_bf16_f32 v{pk+2*g4}, v{acc+4*g4}, v{acc+4*g4+1}")
        A(f"  v_cvt_pk_bf16_f32 v{pk+2*g4+1}, v{acc+4*g4+2}, v{acc+4*g4+3}")
    for g4 in range(4):
        A(f"  buffer_store_dwordx2 {v(pk+2*g4,2)}, v{ooff}, s[{SO}:{SO+3}], 0 offen offset:{16*g4}{nt('ntout')}")
    ST(); ST(real=True)
    ST.flush(sw, SWS, t0, t1)
    A.label(EXIT)
    A("  s_endpgm")
    kernel_desc(A, name, 256, 102, 256)
```

```python
from common import *

class VM:
    def __init__(self): self.ops = []
    def issue(self, tag): self.ops.append(tag)
    def n_after(self, tags):
        if isinstance(tags, str): tags = [tags]
        last = max((i for i, t in enumerate(self.ops) if t in tags), default=-1)
        assert last >= 0, tags
        return len(self.ops) - 1 - last
    def wait(self, A, tags):
        n = self.n_after(tags)
        assert n <= 63, n
        A(f"  s_waitcnt vmcnt({n})")
    def drain(self, A):
        A(f"  s_waitcnt vmcnt(0)")
        self.ops = []

class G4:
    def __init__(self, xslots, wslots, with_kv=False, w2_off=None, g4_off=None):
        self.X = xslots; self.W = wslots; self.NS = len(xslots); assert len(wslots) == self.NS
        self.with_kv = with_kv; self.W2 = w2_off; self.G4 = g4_off
        self.NST = 16

def setup_dma(A, c, R):
    lane = R['lane']; t0, t1, t2 = R['t0'], R['t1'], R['t2']
    sw, srb, shg = R['s_wave'], R['s_rb'], R['s_hg']
    st0, st1 = R['st0'], R['st1']
    A(f"  s_lshl_b32 s{st0}, s{sw}, 3")
    A(f"  v_lshrrev_b32 v{t0}, 4, v{lane}")
    A(f"  v_lshlrev_b32 v{t1}, 2, v{t0}")
    A(f"  v_and_b32 v{t2}, 15, v{lane}")
    A(f"  v_xor_b32 v{t1}, v{t1}, v{t2}")
    A(f"  v_lshlrev_b32 v{t1}, 4, v{t1}")
    A(f"  v_add_u32 v{t0}, s{st0}, v{t0}")
    A(f"  v_lshl_add_u32 v{t0}, v{t0}, 11, v{t1}")
    A(f"  s_lshl_b32 s{st1}, s{shg}, 8")
    A(f"  v_add_u32 v{R['woff0']}, s{st1}, v{t0}")
    A(f"  v_add_u32 v{R['woff1']}, 8192, v{R['woff0']}")
    A(f"  v_lshrrev_b32 v{t0}, 3, v{lane}")
    A(f"  v_add_u32 v{t0}, s{st0}, v{t0}")
    A(f"  v_bfe_u32 v{t1}, v{t0}, 1, 3")
    A(f"  v_and_b32 v{t2}, 7, v{lane}")
    A(f"  v_xor_b32 v{t1}, v{t1}, v{t2}")
    A(f"  v_lshlrev_b32 v{t1}, 4, v{t1}")
    A(f"  s_lshl_b32 s{st1}, s{srb}, 6")
    A(f"  v_add_u32 v{t0}, s{st1}, v{t0}")
    A(f"  v_lshl_add_u32 v{R['xoff']}, v{t0}, 11, v{t1}")

def x_issue(c, R, st, ks):
    sx = R['srd_x']; st1 = R['st1']
    return [f"  s_add_u32 m0, s{R['s_w1024']}, {c.X[st % c.NS]}",
            f"  s_lshl_b32 s{st1}, s{R['s_kx']}, 7",
            f"  buffer_load_dwordx4 v{R['xoff']}, s[{sx}:{sx+3}], s{st1} offen{R.get('scx','')} lds",
            f"  s_add_u32 s{R['s_kx']}, s{R['s_kx']}, 1",
            f"  s_and_b32 s{R['s_kx']}, s{R['s_kx']}, 15"]

def w_issue(c, R, st):
    swd = R['srd_w']; st1 = R['st1']
    a = [f"  s_add_u32 m0, s{R['s_w2048']}, {c.W[st % c.NS]}",
         f"  s_lshl_b32 s{st1}, s{R['s_kw']}, 17",
         f"  buffer_load_dwordx4 v{R['woff0']}, s[{swd}:{swd+3}], s{st1} offen{R.get('scw','')} lds"]
    b = [f"  s_add_u32 m0, m0, 1024",
         f"  s_add_u32 s{R['s_kw']}, s{R['s_kw']}, 1",
         f"  buffer_load_dwordx4 v{R['woff1']}, s[{swd}:{swd+3}], s{st1} offen{R.get('scw','')} lds",
         f"  s_and_b32 s{R['s_kw']}, s{R['s_kw']}, 15"]
    return a, b

def setup_reads(A, c, R, perm_cols):
    lane = R['lane']; t0, t1, t2, t3 = R['t0'], R['t1'], R['t2'], R['t3']
    sw = R['s_wave']; st0, st1 = R['st0'], R['st1']
    A(f"  v_and_b32 v{t0}, 3, v{lane}")
    if perm_cols:
        A(f"  v_and_b32 v{t1}, 1, v{t0}")
        A(f"  v_lshlrev_b32 v{t1}, 1, v{t1}")
        A(f"  v_lshrrev_b32 v{t0}, 1, v{t0}")
        A(f"  v_or_b32 v{t0}, v{t0}, v{t1}")
    A(f"  v_lshrrev_b32 v{t1}, 1, v{t0}")
    A(f"  v_and_b32 v{t0}, 1, v{t0}")
    A(f"  v_lshlrev_b32 v{t0}, 3, v{t0}")
    A(f"  v_bfe_u32 v{t2}, v{lane}, 4, 1")
    A(f"  v_lshlrev_b32 v{t2}, 1, v{t2}")
    A(f"  v_add_u32 v{t1}, v{t1}, v{t2}")
    A(f"  s_lshr_b32 s{st1}, s{sw}, 1")
    A(f"  s_lshl_b32 s{st1}, s{st1}, 2")
    A(f"  v_add_u32 v{t1}, s{st1}, v{t1}")
    A(f"  v_bfe_u32 v{t2}, v{lane}, 2, 2")
    A(f"  v_lshlrev_b32 v{t3}, 2, v{t2}")
    A(f"  v_xor_b32 v{t1}, v{t1}, v{t3}")
    A(f"  v_lshlrev_b32 v{t1}, 4, v{t1}")
    A(f"  v_add_u32 v{t0}, v{t0}, v{t1}")
    A(f"  v_lshrrev_b32 v{t1}, 5, v{lane}")
    A(f"  v_lshlrev_b32 v{t1}, 3, v{t1}")
    A(f"  v_add_u32 v{t1}, v{t1}, v{t2}")
    A(f"  v_lshlrev_b32 v{t1}, 8, v{t1}")
    A(f"  v_add_u32 v{t0}, v{t0}, v{t1}")
    A(f"  s_and_b32 s{st1}, s{sw}, 1")
    A(f"  s_lshl_b32 s{st0}, s{st1}, 13")
    A(f"  v_add_u32 v{R['abase']}, s{st0}, v{t0}")
    A(f"  v_and_b32 v{t0}, 31, v{lane}")
    A(f"  v_bfe_u32 v{t1}, v{t0}, 1, 3")
    A(f"  v_lshrrev_b32 v{t2}, 5, v{lane}")
    A(f"  v_xor_b32 v{t1}, v{t1}, v{t2}")
    A(f"  s_lshl_b32 s{st1}, s{st1}, 2")
    A(f"  v_xor_b32 v{t1}, s{st1}, v{t1}")
    A(f"  v_lshlrev_b32 v{t1}, 4, v{t1}")
    A(f"  v_lshl_add_u32 v{R['bbase']}, v{t0}, 7, v{t1}")
    A(f"  v_xor_b32 v{R['bbase']+1}, 32, v{R['bbase']}")
    if c.with_kv:
        A(f"  s_and_b32 s{st1}, s{sw}, 3")
        A(f"  s_lshl_b32 s{st1}, s{st1}, 4")
        A(f"  v_and_b32 v{t0}, 15, v{lane}")
        A(f"  v_add_u32 v{t0}, s{st1}, v{t0}")
        A(f"  v_bfe_u32 v{t1}, v{t0}, 1, 3")
        A(f"  v_lshrrev_b32 v{t2}, 4, v{lane}")
        A(f"  s_lshr_b32 s{st1}, s{sw}, 2")
        A(f"  s_lshl_b32 s{st1}, s{st1}, 2")
        A(f"  v_add_u32 v{t2}, s{st1}, v{t2}")
        A(f"  v_xor_b32 v{t1}, v{t1}, v{t2}")
        A(f"  v_lshlrev_b32 v{t1}, 4, v{t1}")
        A(f"  v_lshl_add_u32 v{R['x16base']}, v{t0}, 7, v{t1}")
        A(f"  v_lshrrev_b32 v{t0}, 4, v{lane}")
        A(f"  v_lshlrev_b32 v{t0}, 3, v{t0}")
        A(f"  v_bfe_u32 v{t1}, v{lane}, 2, 2")
        A(f"  v_add_u32 v{t0}, v{t0}, v{t1}")
        A(f"  s_lshl_b32 s{st1}, s{st1}, 3")
        A(f"  v_add_u32 v{t0}, s{st1}, v{t0}")
        A(f"  v_and_b32 v{t1}, 3, v{lane}")
        A(f"  v_lshlrev_b32 v{t2}, 4, v{t0}")
        A(f"  v_lshlrev_b32 v{t3}, 3, v{t1}")
        A(f"  v_add_u32 v{t2}, v{t2}, v{t3}")
        A(f"  v_add_u32 v{t2}, {c.W2}, v{t2}")
        A(f"  v_lshlrev_b32 v{t0}, 3, v{t0}")
        A(f"  v_add_u32 v{t0}, {c.G4}, v{t0}")
        A(f"  v_cmp_gt_u32 vcc, 2, v{t1}")
        A(f"  v_mov_b32 v{t1}, 32")
        A(f"  v_mov_b32 v{t3}, 64")
        A(f"  v_cndmask_b32 v{R['w2base']}, v{t0}, v{t2}, vcc")
        A(f"  v_cndmask_b32 v{R['w2inc']}, v{t1}, v{t3}, vcc")
        A(f"  v_lshlrev_b32 v{R['w2mul']}, 4, v{R['w2inc']}")

def addr_lines(c, R, st):
    L = [f"  v_add_u32 v{R['aaddr']}, {c.W[st % c.NS]}, v{R['abase']}",
         f"  v_add_u32 v{R['baddr']}, {c.X[st % c.NS]}, v{R['bbase']}",
         f"  v_add_u32 v{R['baddr']+1}, {c.X[st % c.NS]}, v{R['bbase']+1}"]
    if c.with_kv:
        L += [f"  v_add_u32 v{R['x16addr']}, {c.X[st % c.NS]}, v{R['x16base']}",
              f"  v_mad_u32_u24 v{R['w2addr']}, v{R['w2mul']}, s{R['s_kr']}, v{R['w2base']}",
              f"  s_add_u32 s{R['s_kr']}, s{R['s_kr']}, 1",
              f"  v_add_u32 v{R['w2addr']+1}, v{R['w2inc']}, v{R['w2addr']}",
              f"  s_and_b32 s{R['s_kr']}, s{R['s_kr']}, 15"]
    return L

def read_lines(c, R, st):
    par = st % 2
    af = R['af'] + 8 * par; bf = R['bf'] + 16 * par
    L = []
    for q in range(2):
        L.append(f"  ds_read_b64_tr_b16 {v(af+4*q,2)}, v{R['aaddr']} offset:{q*4096}")
        L.append(f"  ds_read_b64_tr_b16 {v(af+4*q+2,2)}, v{R['aaddr']} offset:{q*4096+1024}")
        L.append(f"  ds_read_b128 {v(bf+8*q,4)}, v{R['baddr']+q}")
        L.append(f"  ds_read_b128 {v(bf+8*q+4,4)}, v{R['baddr']+q} offset:4096")
    if c.with_kv:
        x = R['x16f'] + 4 * par; w = R['w2f'] + 4 * par
        L.append(f"  ds_read_b128 {v(x,4)}, v{R['x16addr']}")
        L.append(f"  ds_read_b64_tr_b16 {v(w,2)}, v{R['w2addr']}")
        L.append(f"  ds_read_b64_tr_b16 {v(w+2,2)}, v{R['w2addr']+1}")
    return L

def emit_x(A, c, R, vm, st):
    for l in x_issue(c, R, st, None): A(l)
    vm.issue(f"X{st}")
def emit_w(A, c, R, vm, st):
    a, b = w_issue(c, R, st)
    for l in a + b: A(l)
    vm.issue(f"W{st}"); vm.issue(f"W{st}")

def gemm_main(A, c, R, vm, tail_hook=None, ST=None):
    NS = c.NS; acc = R['acc']
    vm.wait(A, ["X0", "W0"])
    A(f"  s_barrier")
    for l in addr_lines(c, R, 0): A(l)
    for l in read_lines(c, R, 0): A(l)
    for l in addr_lines(c, R, 1): A(l)
    vm.wait(A, ["X1", "W1"])
    A(f"  s_barrier")
    for st in range(c.NST):
        par = st % 2
        af = R['af'] + 8 * par; bf = R['bf'] + 16 * par
        if ST is not None and st in (0, 8): ST()
        A(f"  s_waitcnt lgkmcnt(0)")
        rds = read_lines(c, R, st + 1) if st + 1 < c.NST else []
        nxt = NS - 1 if st == 0 else st - 1 + NS
        groups = []
        if nxt < c.NST:
            a, b = w_issue(c, R, nxt)
            groups = [(x_issue(c, R, nxt, None), f"X{nxt}"), (a, f"W{nxt}"), (b, f"W{nxt}")]
        elif tail_hook:
            groups = tail_hook(st)
        addr = addr_lines(c, R, st + 2) if st + 2 < c.NST else []
        mf = []
        for q in range(2):
            for rh in range(2):
                mf.append(f"  v_mfma_f32_32x32x16_bf16 {v(acc+16*rh,16)}, {v(af+4*q,4)}, {v(bf+8*q+4*rh,4)}, {v(acc+16*rh,16)}")
        if c.with_kv:
            mf.append(f"  v_mfma_f32_16x16x32_bf16 {v(R['acc16'],4)}, {v(R['x16f']+4*par,4)}, {v(R['w2f']+4*par,4)}, {v(R['acc16'],4)}")
        nm = len(mf)
        per_r = (len(rds) + 3) // 4
        def emit_group(g):
            lines, tags = g
            for l in lines: A(l)
            for t in ([tags] if isinstance(tags, str) else tags): vm.issue(t)
        for i, m in enumerate(mf):
            A(m)
            for l in rds[i*per_r:(i+1)*per_r]: A(l)
            if i < len(groups): emit_group(groups[i])
        for l in rds[nm*per_r:]: A(l)
        for g in groups[nm:]: emit_group(g)
        for l in addr: A(l)
        if st + 2 < c.NST:
            vm.wait(A, [f"X{st+2}", f"W{st+2}"])
            A(f"  s_barrier")

def gemm_reduce(A, R, scratch):
    lane = R['lane']; t0, t1 = R['t0'], R['t1']; sw = R['s_wave']; st0 = R['st0']
    acc = R['acc']; tmp = R['bf']
    L1 = A.uniq("gr"); L2 = A.uniq("gr")
    A(f"  v_lshlrev_b32 v{t0}, 4, v{lane}")
    A(f"  s_lshl_b32 s{st0}, s{sw}, 12")
    A(f"  s_add_u32 s{st0}, s{st0}, {scratch}")
    A(f"  v_add_u32 v{t1}, s{st0}, v{t0}")
    A(f"  s_bitcmp1_b32 s{sw}, 0")
    A(f"  s_cbranch_scc0 {L1}")
    for i in range(4): A(f"  ds_write_b128 v{t1}, {v(acc+4*i,4)} offset:{1024*i}")
    A(f"  s_nop 1")
    for i in range(16): A(f"  v_mov_b32 v{acc+i}, v{acc+16+i}")
    A(f"  s_branch {L2}")
    A.label(L1)
    for i in range(4): A(f"  ds_write_b128 v{t1}, {v(acc+16+4*i,4)} offset:{1024*i}")
    A.label(L2)
    A(f"  v_xor_b32 v{t1}, 4096, v{t1}")
    A(f"  s_waitcnt lgkmcnt(0)")
    A(f"  s_barrier")
    for i in range(4): A(f"  ds_read_b128 {v(tmp+4*i,4)}, v{t1} offset:{1024*i}")
    A(f"  s_waitcnt lgkmcnt(0)")
    for i in range(16): A(f"  v_add_f32 v{acc+i}, v{acc+i}, v{tmp+i}")


class LG:
    def __init__(self): self.ops = []
    def issue(self, tag): self.ops.append(tag)
    def wait(self, A, tags):
        if isinstance(tags, str): tags = [tags]
        last = max((i for i, t in enumerate(self.ops) if t in tags), default=-1)
        if last < 0: return
        n = len(self.ops) - 1 - last
        A(f"  s_waitcnt lgkmcnt({min(n, 15)})")
        if n <= 15: self.ops = self.ops[last+1:]
    def drain(self, A):
        A(f"  s_waitcnt lgkmcnt(0)"); self.ops = []
```

```python
from common import *
from gemm import GemmCfg
import os
GOPT = set(os.environ.get('GOPT', '').split(','))


def gemm3_setup_dma(A, c, R):
    lane = R['lane']; t0, t1, t2 = R['t0'], R['t1'], R['t2']
    sw, srb, shg = R['s_wave'], R['s_rb'], R['s_hg']
    st0, st1 = R['st0'], R['st1']
    A(f"  s_lshl_b32 s{st0}, s{sw}, 3")
    A(f"  v_lshrrev_b32 v{t0}, 3, v{lane}")
    A(f"  v_add_u32 v{t0}, s{st0}, v{t0}")
    A(f"  v_bfe_u32 v{t1}, v{t0}, 1, 3")
    A(f"  v_and_b32 v{t2}, 7, v{lane}")
    A(f"  v_xor_b32 v{t1}, v{t1}, v{t2}")
    A(f"  v_lshlrev_b32 v{t1}, 4, v{t1}")
    A(f"  s_lshl_b32 s{st1}, s{srb}, 6")
    A(f"  v_add_u32 v{t0}, s{st1}, v{t0}")
    A(f"  v_lshl_add_u32 v{R['xoff']}, v{t0}, 11, v{t1}")
    A(f"  v_lshrrev_b32 v{t0}, 4, v{lane}")
    A(f"  v_lshlrev_b32 v{t1}, 2, v{t0}")
    A(f"  v_and_b32 v{t2}, 15, v{lane}")
    A(f"  v_xor_b32 v{t1}, v{t1}, v{t2}")
    A(f"  v_lshlrev_b32 v{t1}, 4, v{t1}")
    A(f"  v_add_u32 v{t0}, s{st0}, v{t0}")
    A(f"  v_lshl_add_u32 v{t0}, v{t0}, 11, v{t1}")
    A(f"  s_lshl_b32 s{st1}, s{shg}, 8")
    A(f"  v_add_u32 v{R['woff0']}, s{st1}, v{t0}")
    A(f"  v_add_u32 v{R['woff1']}, 8192, v{R['woff0']}")
    if c.with_kv:
        A(f"  v_add_u32 v{t0}, s{st0}, v{lane}")
        A(f"  v_lshlrev_b32 v{t0}, 6, v{t0}")
        A(f"  s_and_b32 s{st1}, s{shg}, 3")
        A(f"  s_lshl_b32 s{st1}, s{st1}, 4")
        A(f"  v_add_u32 v{R['w2off']}, s{st1}, v{t0}")

def gemm3_setup_reads(A, c, R, perm_cols):
    lane = R['lane']; t0, t1, t2, t3 = R['t0'], R['t1'], R['t2'], R['t3']
    sw = R['s_wave']; st0, st1 = R['st0'], R['st1']
    A(f"  v_and_b32 v{t0}, 3, v{lane}")
    if perm_cols:
        A(f"  v_and_b32 v{t1}, 1, v{t0}")
        A(f"  v_lshlrev_b32 v{t1}, 1, v{t1}")
        A(f"  v_lshrrev_b32 v{t0}, 1, v{t0}")
        A(f"  v_or_b32 v{t0}, v{t0}, v{t1}")
    A(f"  v_lshrrev_b32 v{t1}, 1, v{t0}")
    A(f"  v_and_b32 v{t0}, 1, v{t0}")
    A(f"  v_lshlrev_b32 v{t0}, 3, v{t0}")
    A(f"  v_bfe_u32 v{t2}, v{lane}, 4, 1")
    A(f"  v_lshlrev_b32 v{t2}, 1, v{t2}")
    A(f"  v_add_u32 v{t1}, v{t1}, v{t2}")
    A(f"  s_lshr_b32 s{st1}, s{sw}, 1")
    A(f"  s_lshl_b32 s{st1}, s{st1}, 2")
    A(f"  v_add_u32 v{t1}, s{st1}, v{t1}")
    A(f"  v_bfe_u32 v{t2}, v{lane}, 2, 2")
    A(f"  v_lshlrev_b32 v{t3}, 2, v{t2}")
    A(f"  v_xor_b32 v{t1}, v{t1}, v{t3}")
    A(f"  v_lshlrev_b32 v{t1}, 4, v{t1}")
    A(f"  v_add_u32 v{t0}, v{t0}, v{t1}")
    A(f"  v_lshrrev_b32 v{t1}, 5, v{lane}")
    A(f"  v_lshlrev_b32 v{t1}, 3, v{t1}")
    A(f"  v_add_u32 v{t1}, v{t1}, v{t2}")
    A(f"  v_lshlrev_b32 v{t1}, 8, v{t1}")
    A(f"  v_add_u32 v{t0}, v{t0}, v{t1}")
    A(f"  s_and_b32 s{st1}, s{sw}, 1")
    A(f"  s_lshl_b32 s{st0}, s{st1}, 13")
    A(f"  s_add_u32 s{st0}, s{st0}, {c.W_OFF}")
    A(f"  v_add_u32 v{R['abase']}, s{st0}, v{t0}")
    A(f"  v_and_b32 v{t0}, 31, v{lane}")
    A(f"  v_bfe_u32 v{t1}, v{t0}, 1, 3")
    A(f"  v_lshrrev_b32 v{t2}, 5, v{lane}")
    A(f"  v_xor_b32 v{t1}, v{t1}, v{t2}")
    A(f"  s_lshl_b32 s{st1}, s{st1}, 2")
    A(f"  v_xor_b32 v{t1}, s{st1}, v{t1}")
    A(f"  v_lshlrev_b32 v{t1}, 4, v{t1}")
    A(f"  v_lshl_add_u32 v{R['bbase']}, v{t0}, 7, v{t1}")
    A(f"  v_xor_b32 v{R['bbase']+1}, 32, v{R['bbase']}")
    if c.with_kv:
        A(f"  s_and_b32 s{st1}, s{sw}, 3")
        A(f"  s_lshl_b32 s{st1}, s{st1}, 4")
        A(f"  v_and_b32 v{t0}, 15, v{lane}")
        A(f"  v_add_u32 v{t0}, s{st1}, v{t0}")
        A(f"  v_bfe_u32 v{t1}, v{t0}, 1, 3")
        A(f"  v_lshrrev_b32 v{t2}, 4, v{lane}")
        A(f"  s_lshr_b32 s{st1}, s{sw}, 2")
        A(f"  s_lshl_b32 s{st1}, s{st1}, 2")
        A(f"  v_add_u32 v{t2}, s{st1}, v{t2}")
        A(f"  v_xor_b32 v{t1}, v{t1}, v{t2}")
        A(f"  v_lshlrev_b32 v{t1}, 4, v{t1}")
        A(f"  v_lshl_add_u32 v{R['x16base']}, v{t0}, 7, v{t1}")
        A(f"  v_lshrrev_b32 v{t0}, 4, v{lane}")
        A(f"  v_lshlrev_b32 v{t0}, 3, v{t0}")
        A(f"  v_bfe_u32 v{t1}, v{lane}, 2, 2")
        A(f"  v_add_u32 v{t0}, v{t0}, v{t1}")
        A(f"  s_lshl_b32 s{st1}, s{st1}, 3")
        A(f"  v_add_u32 v{t0}, s{st1}, v{t0}")
        A(f"  v_and_b32 v{t1}, 3, v{lane}")
        A(f"  v_lshlrev_b32 v{t2}, 4, v{t0}")
        A(f"  v_lshlrev_b32 v{t3}, 3, v{t1}")
        A(f"  v_add_u32 v{t2}, v{t2}, v{t3}")
        A(f"  v_add_u32 v{t2}, {c.W2_OFF}, v{t2}")
        A(f"  v_lshlrev_b32 v{t0}, 3, v{t0}")
        A(f"  v_add_u32 v{t0}, {c.G4_OFF}, v{t0}")
        A(f"  v_cmp_gt_u32 s[{R['s_mask']}:{R['s_mask']+1}], 2, v{t1}")
        A(f"  s_nop 1")
        A(f"  v_cndmask_b32 v{R['w2base']}, v{t0}, v{t2}, s[{R['s_mask']}:{R['s_mask']+1}]")
        A(f"  v_mov_b32 v{t0}, 32")
        A(f"  v_mov_b32 v{t1}, 64")
        A(f"  v_cndmask_b32 v{R['w2inc']}, v{t0}, v{t1}, s[{R['s_mask']}:{R['s_mask']+1}]")

def issue_groups(c, R, st, scx=""):
    scw = R.get('scw', '')
    scx = R.get('scx', '')
    slot = st % c.NSLOT
    base = slot * c.STAGE + c.BASE
    sx, swd = R['srd_x'], R['srd_w']; st1 = R['st1']
    g = []
    g.append([f"  s_add_u32 m0, s{R['s_w1024']}, {base + c.X_OFF}",
              f"  s_lshl_b32 s{st1}, s{R['s_kst']}, 7",
              f"  buffer_load_dwordx4 v{R['xoff']}, s[{sx}:{sx+3}], s{st1} offen{scx} lds"])
    g.append([f"  s_add_u32 m0, s{R['s_w2048']}, {base + c.W_OFF}",
              f"  s_lshl_b32 s{st1}, s{R['s_kst']}, 17",
              f"  buffer_load_dwordx4 v{R['woff0']}, s[{swd}:{swd+3}], s{st1} offen{scw} lds"])
    g.append([f"  s_add_u32 m0, m0, 1024",
              f"  s_nop 0",
              f"  buffer_load_dwordx4 v{R['woff1']}, s[{swd}:{swd+3}], s{st1} offen{scw} lds"])
    if c.with_kv:
        s2w = R['srd_w2']
        g.append([f"  s_lshr_b32 m0, s{R['s_w1024']}, 3",
                  f"  s_add_u32 m0, m0, {base + c.W2_OFF}",
                  f"  s_lshl_b32 s{st1}, s{R['s_kst']}, 12",
                  f"  s_mov_b64 exec, 0xff",
                  f"  buffer_load_dwordx4 v{R['w2off']}, s[{s2w}:{s2w+3}], s{st1} offen{scw} lds",
                  f"  s_mov_b64 exec, -1"])
    g[-1] = g[-1] + [f"  s_add_u32 s{R['s_kst']}, s{R['s_kst']}, 1", f"  s_and_b32 s{R['s_kst']}, s{R['s_kst']}, 15"]
    return g

def addr_lines(c, R, st):
    base = (st % c.NSLOT) * c.STAGE + c.BASE
    L = []
    L.append(f"  v_add_u32 v{R['aaddr']}, {base}, v{R['abase']}")
    L.append(f"  v_add_u32 v{R['baddr']}, {base}, v{R['bbase']}")
    L.append(f"  v_add_u32 v{R['baddr']+1}, {base}, v{R['bbase']+1}")
    if c.with_kv:
        L.append(f"  v_add_u32 v{R['x16addr']}, {base}, v{R['x16base']}")
        L.append(f"  v_mov_b32 v{R['t0']}, {base}")
        L.append(f"  v_mov_b32 v{R['t1']}, s{R['s_gst']}")
        L.append(f"  s_add_u32 s{R['s_gst']}, s{R['s_gst']}, 512")
        L.append(f"  v_cndmask_b32 v{R['t0']}, v{R['t1']}, v{R['t0']}, s[{R['s_mask']}:{R['s_mask']+1}]")
        L.append(f"  s_and_b32 s{R['s_gst']}, s{R['s_gst']}, 8191")
        L.append(f"  v_add_u32 v{R['w2addr']}, v{R['t0']}, v{R['w2base']}")
        L.append(f"  v_add_u32 v{R['w2addr']+1}, v{R['w2inc']}, v{R['w2addr']}")
    return L

def read_lines(c, R, st):
    par = st % 2
    af = R['af'] + 8 * par; bf = R['bf'] + 16 * par
    L = []
    for q in range(2):
        L.append(f"  ds_read_b64_tr_b16 {v(af+4*q,2)}, v{R['aaddr']} offset:{q*4096}")
        L.append(f"  ds_read_b64_tr_b16 {v(af+4*q+2,2)}, v{R['aaddr']} offset:{q*4096+1024}")
        L.append(f"  ds_read_b128 {v(bf+8*q,4)}, v{R['baddr']+q}")
        L.append(f"  ds_read_b128 {v(bf+8*q+4,4)}, v{R['baddr']+q} offset:4096")
    if c.with_kv:
        x = R['x16f'] + 4 * par; w = R['w2f'] + 4 * par
        L.append(f"  ds_read_b128 {v(x,4)}, v{R['x16addr']}")
        L.append(f"  ds_read_b64_tr_b16 {v(w,2)}, v{R['w2addr']}")
        L.append(f"  ds_read_b64_tr_b16 {v(w+2,2)}, v{R['w2addr']+1}")
    return L

def gemm3_prologue_issue(A, c, R, nst, scx=""):
    for st in range(nst):
        for grp in issue_groups(c, R, st, scx):
            for l in grp: A(l)

def gemm3_main(A, c, R, pre=0, scx="", tail_hook=None, ST=None):
    per = 4 if c.with_kv else 3
    NS = c.NSLOT
    acc = R['acc']
    hooked = 0
    A(f"  s_waitcnt vmcnt({per*(NS-2) + pre})")
    A(f"  s_barrier")
    for l in addr_lines(c, R, 0): A(l)
    for l in read_lines(c, R, 0): A(l)
    for l in addr_lines(c, R, 1): A(l)
    A(f"  s_waitcnt vmcnt({per*(NS-3) + pre})")
    A(f"  s_barrier")
    for st in range(c.NST):
        par = st % 2
        af = R['af'] + 8 * par; bf = R['bf'] + 16 * par
        if ST is not None and st in (0, 8): ST()
        A(f"  s_waitcnt lgkmcnt(0)")
        rds = read_lines(c, R, st + 1) if (st + 1 < c.NST and 'noread' not in GOPT) else []
        nxt = st - 1 + NS
        if st == 0: nxt = NS - 1
        groups = issue_groups(c, R, nxt, scx) if nxt < c.NST else []
        addr = addr_lines(c, R, st + 2) if st + 2 < c.NST else []
        hook = []
        if tail_hook and nxt >= c.NST:
            hook, nv = tail_hook(st)
            hooked += nv
        mf = []
        for q in range(2):
            for rh in range(2):
                mf.append(f"  v_mfma_f32_32x32x16_bf16 {v(acc+16*rh,16)}, {v(af+4*q,4)}, {v(bf+8*q+4*rh,4)}, {v(acc+16*rh,16)}")
        if c.with_kv:
            mf.append(f"  v_mfma_f32_16x16x32_bf16 {v(R['acc16'],4)}, {v(R['x16f']+4*par,4)}, {v(R['w2f']+4*par,4)}, {v(R['acc16'],4)}")
        if 'nomfma' in GOPT: mf = [f"  s_nop 0"] * len(mf)
        if 'nodma' in GOPT: groups = [[l for l in g if 'buffer_load' not in l] for g in groups]
        nm = len(mf)
        per_r = (len(rds) + 3) // 4
        for i, m in enumerate(mf):
            A(m)
            for l in rds[i*per_r:(i+1)*per_r]: A(l)
            if i < len(groups):
                for l in groups[i]: A(l)
        for l in rds[nm*per_r:]: A(l)
        for grp in groups[nm:]:
            for l in grp: A(l)
        for l in addr: A(l)
        for l in hook: A(l)
        if st + 2 < c.NST:
            last_issued = min(c.NST - 1, max(NS - 1, st - 1 + NS))
            n = per * (last_issued - (st + 2)) + hooked + (pre if st + 2 <= NS - 2 else 0)
            A(f"  s_waitcnt vmcnt({n})")
            A(f"  s_barrier")

def gemm3_reduce(A, c, R, scratch):
    lane = R['lane']; t0, t1 = R['t0'], R['t1']; sw = R['s_wave']; st0 = R['st0']
    acc = R['acc']; tmp = R['bf']
    L1 = A.uniq("gr"); L2 = A.uniq("gr")
    A(f"  v_lshlrev_b32 v{t0}, 4, v{lane}")
    A(f"  s_lshl_b32 s{st0}, s{sw}, 12")
    A(f"  s_add_u32 s{st0}, s{st0}, {scratch}")
    A(f"  v_add_u32 v{t1}, s{st0}, v{t0}")
    A(f"  s_and_b32 s{st0}, s{sw}, 1")
    A(f"  s_cmp_eq_u32 s{st0}, 0")
    A(f"  s_cbranch_scc1 {L1}")
    for i in range(4): A(f"  ds_write_b128 v{t1}, {v(acc+4*i,4)} offset:{1024*i}")
    A(f"  s_nop 1")
    for i in range(16): A(f"  v_mov_b32 v{acc+i}, v{acc+16+i}")
    A(f"  s_branch {L2}")
    A.label(L1)
    for i in range(4): A(f"  ds_write_b128 v{t1}, {v(acc+16+4*i,4)} offset:{1024*i}")
    A.label(L2)
    A(f"  s_xor_b32 s{st0}, s{sw}, 1")
    A(f"  s_lshl_b32 s{st0}, s{st0}, 12")
    A(f"  s_add_u32 s{st0}, s{st0}, {scratch}")
    A(f"  v_add_u32 v{t1}, s{st0}, v{t0}")
    A(f"  s_waitcnt lgkmcnt(0)")
    A(f"  s_barrier")
    for i in range(4): A(f"  ds_read_b128 {v(tmp+4*i,4)}, v{t1} offset:{1024*i}")
    A(f"  s_waitcnt lgkmcnt(0)")
    for i in range(16): A(f"  v_add_f32 v{acc+i}, v{acc+i}, v{tmp+i}")
```

```python
import sys
sys.path.insert(0, "gen")
import common
if "--prof" in sys.argv:
    common.PROF = True
    sys.argv.remove("--prof")
from common import *
import k1
try:
    import k2
except ImportError:
    k2 = None
try:
    import k3
except ImportError:
    k3 = None

HEADER = open("gated_mix__ssm_conv_h3__grouped_kv_mqa__prompt.s.ref").read().split("; Override launch")[0]

def build(which=("k1", "k2", "k3")):
    A = Asm()
    A(HEADER.rstrip("\n"))
    lds = {"k1": 163840, "k2": 163840, "k3": 163840}
    for k in which:
        A(f"; @launch kernel={k}_kernel grid=(256,1,1) block=(512,1,1) lds={lds[k]}")
    A('.amdgcn_target "amdgcn-amd-amdhsa--gfx950"')
    A(".text")
    for k in which:
        {"k1": k1.gen_k1, "k2": k2.gen_k2 if k2 else None, "k3": k3.gen_k3 if k3 else None}[k](A, f"{k}_kernel")
    return A.text()

def build_fused():
    import fused
    A = Asm()
    A(HEADER.rstrip("\n"))
    A("; @launch grid=(256,1,1) block=(512,1,1) lds=163840")
    A('.amdgcn_target "amdgcn-amd-amdhsa--gfx950"')
    A(".text")
    fused.gen_fused(A, "gated_mix__ssm_conv_h3__grouped_kv_mqa__prompt_kernel")
    return A.text()

def build_fused2():
    import fused2
    A = Asm()
    A(HEADER.rstrip("\n"))
    A("; @launch grid=(256,1,1) block=(512,1,1) lds=163840")
    A('.amdgcn_target "amdgcn-amd-amdhsa--gfx950"')
    A(".text")
    fused2.gen(A, "gated_mix__ssm_conv_h3__grouped_kv_mqa__prompt_kernel")
    return A.text()

def build_fusedN(modname):
    import importlib
    m = importlib.import_module(modname)
    A = Asm()
    A(HEADER.rstrip("\n"))
    A("; @launch grid=(256,1,1) block=(512,1,1) lds=163840")
    A('.amdgcn_target "amdgcn-amd-amdhsa--gfx950"')
    A(".text")
    m.gen(A, "gated_mix__ssm_conv_h3__grouped_kv_mqa__prompt_kernel")
    return A.text()

if __name__ == "__main__":
    if len(sys.argv) > 2 and sys.argv[2] in ("fused3", "fused4", "fused5", "fused6"):
        open(sys.argv[1], "w").write(build_fusedN(sys.argv[2]))
        sys.exit(0)
    if len(sys.argv) > 2 and sys.argv[2] == "fused2":
        open(sys.argv[1], "w").write(build_fused2())
        sys.exit(0)
    if len(sys.argv) > 2 and sys.argv[2] == "fused":
        open(sys.argv[1], "w").write(build_fused())
        sys.exit(0)
    which = sys.argv[2].split(",") if len(sys.argv) > 2 else ["k1", "k2", "k3"]
    open(sys.argv[1], "w").write(build(which))
```

```python
from common import *
import os
OPT = set(os.environ.get('AOPT', '').split(','))
CHUNK = 32768

def ones_setup(A, R):
    lane = R['lane']; t0, t1, t2 = R['t0'], R['t1'], R['t2']; ones = R['ones']
    A(f"  v_and_b32 v{t0}, 3, v{lane}")
    A(f"  v_bfe_u32 v{t1}, v{lane}, 2, 1")
    A(f"  v_bfe_u32 v{t2}, v{lane}, 4, 1")
    A(f"  v_xor_b32 v{t1}, v{t1}, v{t2}")
    A(f"  v_or_b32 v{t0}, v{t0}, v{t1}")
    A(f"  v_cmp_eq_u32 vcc, 0, v{t0}")
    A(f"  v_mov_b32 v{t0}, 0x3f803f80")
    A(f"  v_lshlrev_b32 v{R['dmaoff']}, 4, v{lane}")
    A(f"  v_cndmask_b32 v{ones}, 0, v{t0}, vcc")
    for i in range(1, 4):
        A(f"  v_mov_b32 v{ones+i}, v{ones}")

def attn_pass(A, R, hook_c0=None, hook_c5=None, last_groups=None, ST=None, pre_issued=False, touch_hook=None):
    t0 = R['t0']
    qf = R['qf']; O = R['O']; L = R['L']; negm = R['negm']; S = R['S']; P = R['P']; KF = R['KF']; VF = R['VF']; ones = R['ones']
    SWS = R['srd_ws']; sw = R['s_wave']
    cur = R['rd0']; nxt = R['rd1']; lane16 = R['dmaoff']
    s_c, s_slot, s_goff, s_m0b, s_m0v = 20, 21, 22, 23, 24
    A(f"  s_lshl_b32 s{s_m0b}, s{sw}, 12")
    A(f"  s_add_u32 s{s_goff}, s{s_m0b}, {WS_KVF}")
    Lskip = A.uniq("pre")
    if pre_issued:
        A(f"  s_cmp_eq_u32 s101, 0")
        A(f"  s_cbranch_scc1 {Lskip}")
    for ch in range(2):
        A(f"  s_add_u32 m0, s{s_m0b}, {ch*CHUNK}")
        A(f"  s_nop 0")
        for i in range(4):
            A(f"  buffer_load_dwordx4 v{lane16}, s[{SWS}:{SWS+3}], s{s_goff} offen offset:{i*1024} lds")
        A(f"  s_add_u32 s{s_goff}, s{s_goff}, {CHUNK}")
    A(f"  s_waitcnt vmcnt(0)")
    A(f"  s_sub_u32 s{s_goff}, s{s_goff}, {2*CHUNK}")
    A.label(Lskip)
    A(f"  s_add_u32 s{s_goff}, s{s_goff}, {2*CHUNK}")
    for i in range(16): A(f"  v_mov_b32 v{O+i}, 0")
    for i in range(4): A(f"  v_mov_b32 v{L+i}, 0")
    for i in range(8): A(f"  v_mov_b32 v{P+8+i}, 0")
    for i in range(8): A(f"  v_mov_b32 v{VF+8+i}, 0")
    A(f"  s_mov_b32 s{s_slot}, {2*CHUNK}")
    A(f"  s_mov_b32 s{s_c}, 0")
    A(f"  v_mov_b32 v{cur}, v{lane16}")
    A(f"  v_add_u32 v{nxt}, {CHUNK}, v{lane16}")
    A(f"  s_waitcnt vmcnt({(pre_issued if pre_issued is not True else 6) if pre_issued else 0})")
    if ST: ST()
    A(f"  s_barrier")
    if ST: ST()
    def rk(j2):
        b = KF + 8 * (j2 % 2)
        r, jj = (cur, j2) if j2 < 8 else (nxt, j2 - 8)
        return [f"  ds_read_b128 {v(b+4*f,4)}, v{r} offset:{jj*4096 + f*1024}" for f in range(2)]
    def rv(j):
        b = VF + 8 * (j % 2)
        return [f"  ds_read_b128 {v(b+4*f,4)}, v{cur} offset:{j*4096 + (2+f)*1024}" for f in range(2)]
    def qk(par):
        sb = S + 16 * par; kb = KF + 8 * par
        return [f"  v_mfma_f32_32x32x16_bf16 {v(sb,16)}, {v(kb,4)}, {v(qf,4)}, {v(negm,16)}",
                f"  v_mfma_f32_32x32x16_bf16 {v(sb,16)}, {v(kb+4,4)}, {v(qf+4,4)}, {v(sb,16)}"]
    def pv(par):
        pb = P + 8 * par; vb = VF + 8 * par
        return ([f"  v_mfma_f32_32x32x16_bf16 {v(O,16)}, {v(vb,4)}, {v(pb,4)}, {v(O,16)}",
                 f"  v_mfma_f32_32x32x16_bf16 {v(O,16)}, {v(vb+4,4)}, {v(pb+4,4)}, {v(O,16)}"],
                [f"  v_mfma_f32_16x16x32_bf16 {v(L,4)}, {v(ones,4)}, {v(pb,4)}, {v(L,4)}",
                 f"  v_mfma_f32_16x16x32_bf16 {v(L,4)}, {v(ones,4)}, {v(pb+4,4)}, {v(L,4)}"])
    for l in rk(0) + rk(1): A(l)
    A(f"  s_waitcnt lgkmcnt(2)")
    for l in qk(0): A(l)
    A.nop(14)
    def tile(j, last, extra):
        par = j % 2
        sb = S + 16 * par; pb = P + 8 * par
        q = qk(1 - par); pvs, sms = pv(1 - par)
        e = [f"  v_exp_f32 v{sb+i}, v{sb+i}" for i in range(16)]
        c = [f"  v_cvt_pk_bf16_f32 v{pb+i}, v{sb+2*i}, v{sb+2*i+1}" for i in range(8)]
        k_rd = rk(j + 2) if not (last and j >= 6) else []
        v_rd = rv(j)
        rds = k_rd + v_rd
        if last and j == 7: q = [None, None]
        M = [q[0], pvs[0], q[1], sms[0], pvs[1], sms[1]]
        gaps = [[e[0], e[1], e[2]], [e[3], e[4], e[5]], [e[6], e[7], c[0], c[1]], [e[8], e[9], c[2]],
                [e[10], e[11], e[12], c[3]], [e[13], e[14], e[15], c[4], c[5], c[6], c[7]]]
        A(f"  s_waitcnt lgkmcnt(0)")
        for i in range(6):
            if M[i]: A(M[i])
            if i < len(rds): A(rds[i])
            if i < len(extra):
                for l in extra[i]: A(l)
            for l in gaps[i]: A(l)
    LOOP = A.uniq("attn")
    BAL = 'bal' in OPT
    if BAL:
        LP = A.uniq("prio"); LP2 = A.uniq("prio")
        A(f"  s_cmp_lt_u32 s{sw}, 4")
        A(f"  s_cbranch_scc1 {LP}")
        A(f"  s_setprio 1")
        A(f"  s_branch {LP2}")
        A.label(LP)
        A(f"  s_setprio 2")
        A.label(LP2)
    def chunk_body(dma, touches):
        for j in range(8):
            A(f"  ; ---- tile {j}")
            extra = []
            if j == 6:
                if hook_c5: hook_c5(s_c) if dma else None
                A(f"  s_waitcnt vmcnt({2 if (touch_hook and touches) else 0})")
                A(f"  s_barrier")
                if BAL:
                    Lb = A.uniq("bal")
                    A(f"  s_cmp_ge_u32 s{sw}, 4")
                    A(f"  s_cbranch_scc1 {Lb}")
                    A(f"  s_setprio 2")
                    A.label(Lb)
                if dma:
                    A(f"  s_add_u32 m0, s{s_m0b}, s{s_slot}")
                    if hook_c0: hook_c0(s_c)
            if j == 4 and BAL:
                Lb = A.uniq("bal")
                A(f"  s_cmp_ge_u32 s{sw}, 4")
                A(f"  s_cbranch_scc1 {Lb}")
                A(f"  s_setprio 0")
                A.label(Lb)
            if j in (6, 7) and dma:
                def piece(i):
                    return [f"  buffer_load_dwordx4 v{lane16}, s[{SWS}:{SWS+3}], s{s_goff} offen offset:{i*1024} lds"]
                b_ = 2 * (j - 6)
                extra = [[], [], [], [], piece(b_), piece(b_ + 1)]
            if j == 1 and touch_hook and touches:
                extra = [[], [], [], [], touch_hook(s_c), []]
            tile(j, False, extra)
            if j == 7 and dma:
                A(f"  s_add_u32 s{s_goff}, s{s_goff}, {CHUNK}")
                A(f"  s_add_u32 s{s_slot}, s{s_slot}, {CHUNK}")
                A(f"  s_cmp_eq_u32 s{s_slot}, {3*CHUNK}")
                A(f"  s_cselect_b32 s{s_slot}, 0, s{s_slot}")
        A(f"  v_mov_b32 v{cur}, v{nxt}")
        A(f"  v_add_u32 v{nxt}, {CHUNK}, v{nxt}")
        A(f"  v_cmp_le_u32 vcc, {3*CHUNK}, v{nxt}")
        A(f"  v_subrev_u32 v{t0}, {3*CHUNK}, v{nxt}")
        A(f"  s_add_u32 s{s_c}, s{s_c}, 1")
        A(f"  v_cndmask_b32 v{nxt}, v{nxt}, v{t0}, vcc")
    A(f".p2align 6")
    A.label(LOOP)
    chunk_body(True, True)
    A(f"  s_cmp_lt_u32 s{s_c}, 6")
    A(f"  s_cbranch_scc1 {LOOP}")
    chunk_body(False, False)
    if ST: ST()
    A(f"  s_waitcnt lgkmcnt(0)")
    A(f"  s_barrier")
    groups = list(last_groups or [])
    per = (len(groups) + 7) // 8
    for j in range(8):
        A(f"  ; ---- last tile {j}")
        g = groups[j*per:(j+1)*per]
        extra = [[] for _ in range(6)]
        slots = [4, 5, 3, 2, 1, 0]
        for i, gg in enumerate(g): extra[slots[i % 6]] = extra[slots[i % 6]] + gg
        tile(j, True, extra)
    pvs, sms = pv(1)
    A(f"  s_waitcnt lgkmcnt(0)")
    A(pvs[0]); A(sms[0]); A(pvs[1]); A(sms[1])
    if BAL: A(f"  s_setprio 0")
    A.nop(16)

def max_pass(A, R):
    t0, t1 = R['t0'], R['t1']
    qf = R['qf']; negm = R['negm']; S = R['S']; KF = R['KF']
    SWS = R['srd_ws']; sw = R['s_wave']; lane16 = R['dmaoff']
    s_c, s_goff, s_m0b = 20, 22, 23
    m = R['P']
    A(f"  v_mov_b32 v{m}, 0xff800000")
    A(f"  s_lshl_b32 s{s_m0b}, s{sw}, 12")
    A(f"  s_add_u32 s{s_goff}, s{s_m0b}, {WS_KVF}")
    A(f"  s_mov_b32 s{s_c}, 0")
    LOOP = A.uniq("maxp")
    A.label(LOOP)
    A(f"  s_barrier")
    A(f"  s_mov_b32 m0, s{s_m0b}")
    A(f"  s_nop 0")
    for i in range(2):
        A(f"  buffer_load_dwordx4 v{lane16}, s[{SWS}:{SWS+3}], s{s_goff} offen offset:{i*1024} lds")
    A(f"  s_waitcnt vmcnt(0)")
    A(f"  s_barrier")
    for j in range(8):
        for f in range(2):
            A(f"  ds_read_b128 {v(KF+4*f,4)}, v{lane16} offset:{j*4096 + f*1024}")
        A(f"  s_waitcnt lgkmcnt(0)")
        A(f"  v_mfma_f32_32x32x16_bf16 {v(S,16)}, {v(KF,4)}, {v(qf,4)}, 0")
        A(f"  v_mfma_f32_32x32x16_bf16 {v(S,16)}, {v(KF+4,4)}, {v(qf+4,4)}, {v(S,16)}")
        A.nop(16)
        for i in range(8):
            A(f"  v_max3_f32 v{m}, v{S+2*i}, v{S+2*i+1}, v{m}")
    A(f"  s_add_u32 s{s_goff}, s{s_goff}, {CHUNK}")
    A(f"  s_add_u32 s{s_c}, s{s_c}, 1")
    A(f"  s_cmp_lt_u32 s{s_c}, 8")
    A(f"  s_cbranch_scc1 {LOOP}")
    A(f"  v_mov_b32 v{m+1}, v{m}")
    A(f"  s_nop 1")
    A(f"  v_permlane32_swap_b32 v{m}, v{m+1}")
    A(f"  s_nop 1")
    A(f"  v_max_f32 v{m}, v{m}, v{m+1}")
    for i in range(16):
        A(f"  v_sub_f32 v{negm+i}, 0, v{m}")
    A(f"  s_barrier")
```

```python
from common import *
import os
MIDKP = int(os.environ.get('MIDKP', '2'))
ACOPY = 4160
BOFF = 16640
BCOPY = 4640
CH_BASE = [0, 65536, 91456, 117376]
SF, SX = 8, 12
s_ch, s_hw, s_d, s_lb, s_D = 16, 17, 18, 19, 94

def conv_setup(A, R, V):
    lane = R['lane']; t0, t1, t2 = R['t0'], R['t1'], R['t2']
    sw = R['s_wave']; st0 = R['st0']
    A(f"  s_lshr_b32 s{s_ch}, s{sw}, 1")
    A(f"  s_and_b32 s{s_hw}, s{sw}, 1")
    A(f"  s_lshl_b32 s{s_d}, s{R['s_lid']}, 2")
    A(f"  s_add_u32 s{s_d}, s{s_d}, s{s_ch}")
    A(f"  s_lshl_b32 s{st0}, s{s_d}, 12")
    A(f"  s_add_u32 s{SF}, s{ptr('ssmk')}, s{st0}")
    A(f"  s_addc_u32 s{SF+1}, s{ptr('ssmk')+1}, 0")
    A(f"  s_mov_b32 s{SF+2}, 4096")
    A(f"  s_mov_b32 s{SF+3}, 0x20000")
    A(f"  s_add_u32 s{st0}, s{st0}, {WS_KVT}")
    A(f"  s_add_u32 s{SX}, s{ptr('ws')}, s{st0}")
    A(f"  s_addc_u32 s{SX+1}, s{ptr('ws')+1}, 0")
    A(f"  s_mov_b32 s{SX+2}, 4096")
    A(f"  s_mov_b32 s{SX+3}, 0x20000")
    A(f"  s_mul_i32 s{s_lb}, s{s_ch}, 25920")
    A(f"  s_add_u32 s{s_lb}, s{s_lb}, {65536 - 25920}")
    A(f"  s_cmp_eq_u32 s{s_ch}, 0")
    A(f"  s_cselect_b32 s{s_lb}, 0, s{s_lb}")
    C = {}
    C['vneg'] = V(); C['q16'] = V(); C['xb'] = V(12, 4); C['xe'] = V(3); C['pk'] = V(); C['pka'] = V()
    A(f"  v_lshlrev_b32 v{t0}, 4, v{lane}")
    A(f"  v_add_u32 v{C['vneg']}, -64, v{t0}")
    A(f"  s_lshl_b32 s{st0}, s{s_hw}, 10")
    A(f"  v_add_u32 v{C['q16']}, s{st0}, v{t0}")
    A(f"  v_cmp_le_u32 vcc, 1, v{lane}")
    A(f"  v_mov_b32 v{t0}, 1")
    A(f"  v_mov_b32 v{t1}, 0")
    A(f"  v_addc_co_u32 v{t0}, vcc, 0, v{t0}, vcc")
    A(f"  v_cmp_le_u32 vcc, 1, v{lane}")
    A(f"  s_nop 1")
    A(f"  v_cndmask_b32 v{t1}, 0, 1, vcc")
    A(f"  v_cmp_le_u32 vcc, 3, v{lane}")
    A(f"  s_nop 1")
    A(f"  v_addc_co_u32 v{t0}, vcc, 0, v{t0}, vcc")
    A(f"  v_cmp_le_u32 vcc, 3, v{lane}")
    A(f"  s_nop 1")
    A(f"  v_cndmask_b32 v{t1}, v{t1}, 3, vcc")
    A(f"  v_sub_u32 v{t1}, v{lane}, v{t1}")
    A(f"  v_sub_u32 v{t2}, v{t1}, v{t0}")
    A(f"  v_add_u32 v{t2}, 4, v{t2}")
    A(f"  v_lshlrev_b32 v{t2}, 2, v{t2}")
    A(f"  v_mul_u32_u24 v{C['pka']}, {ACOPY}, v{t0}")
    A(f"  v_add_u32 v{C['pka']}, v{C['pka']}, v{t2}")
    A(f"  v_add_u32 v{C['pka']}, 48, v{C['pka']}")
    A(f"  v_add_u32 v{C['pka']}, s{s_lb}, v{C['pka']}")
    A(f"  v_lshlrev_b32 v{C['pk']}, 2, v{t1}")
    A(f"  v_lshrrev_b32 v{t0}, 1, v{t0}")
    A(f"  v_cmp_eq_u32 vcc, s{s_hw}, v{t0}")
    A(f"  s_nop 1")
    A(f"  s_and_b64 s[26:27], vcc, 0x3f")
    return C

def conv_prefetch_groups(R, C, nt=""):
    st0 = 38
    lane16 = R['dmaoff']
    G = []
    for p in range(3):
        G.append(([f"  s_movk_i32 s{st0}, {2048*p}",
                   f"  buffer_load_dwordx4 {v(C['xb']+4*p,4)}, v{C['q16']}, s[{SX}:{SX+3}], s{st0} offen",
                   f"  buffer_load_dword v{C['xe']+p}, v{C['q16']}, s[{SX}:{SX+3}], s{st0} offen offset:16"], ["cB", "cB"]))
    G.append(([f"  buffer_load_dword v{C['pk']}, v{C['pk']}, s[{SF}:{SF+3}], 0 offen"], ["cP"]))
    first = [f"  s_mul_i32 s39, s{s_hw}, {2*ACOPY}", f"  s_add_u32 s39, s39, s{s_lb}", f"  s_lshl_b32 s61, s{s_hw}, 3"]
    for cc in range(2):
        for j in range(5):
            L = list(first); first = []
            L.append(f"  s_add_u32 m0, s39, {cc*ACOPY + 1024*j}")
            if j == 0:
                L.append(f"  s_add_u32 s{st0}, s61, {4*cc}")
                L.append(f"  buffer_load_dwordx4 v{C['vneg']}, s[{SF}:{SF+3}], s{st0} offen{nt} lds")
            else:
                L.append(f"  s_add_u32 s{st0}, s61, {1024*j + 4*cc - 64}")
                if j == 4: L.append(f"  s_mov_b64 exec, 0xf")
                L.append(f"  buffer_load_dwordx4 v{lane16}, s[{SF}:{SF+3}], s{st0} offen{nt} lds")
                if j == 4: L.append(f"  s_mov_b64 exec, -1")
            G.append((L, ["cA"]))
    return G

def conv_build(A, R, V, C, vm):
    t0, t1 = R['t0'], R['t1']
    tmp = V(4, 4)
    vm.wait(A, ["cB", "cP", "cA"])
    A(f"  v_add_u32 v{t1}, s{s_lb}, v{C['q16']}")
    for p in range(3):
        X = C['xb'] + 4*p
        if p == 2:
            A(f"  v_cmp_gt_u32 vcc, {28*16}, v{C['q16']}")
            A(f"  s_and_saveexec_b64 s[62:63], vcc")
            Ls = A.uniq("cvb")
            A(f"  s_cbranch_execz {Ls}")
        A(f"  ds_write_b128 v{t1}, {v(X,4)} offset:{BOFF + BCOPY + 2048*p}")
        A(f"  v_alignbit_b32 v{tmp}, v{X+1}, v{X}, 16")
        A(f"  v_alignbit_b32 v{tmp+1}, v{X+2}, v{X+1}, 16")
        A(f"  v_alignbit_b32 v{tmp+2}, v{X+3}, v{X+2}, 16")
        A(f"  v_alignbit_b32 v{tmp+3}, v{C['xe']+p}, v{X+3}, 16")
        A(f"  ds_write_b128 v{t1}, {v(tmp,4)} offset:{BOFF + 2048*p}")
        A(f"  s_nop 1")
        if p == 2:
            A.label(Ls)
            A(f"  s_mov_b64 exec, s[62:63]")
    Lp = A.uniq("cvp")
    A(f"  s_cmp_eq_u64 s[26:27], 0")
    A(f"  s_cbranch_scc1 {Lp}")
    A(f"  s_mov_b64 exec, s[26:27]")
    A(f"  ds_write_b32 v{C['pka']}, v{C['pk']}")
    A(f"  s_mov_b64 exec, -1")
    A.label(Lp)

def conv_main(A, R, V, mid_hook=None, start_hook=None):
    lane = R['lane']; t0, t1, t2 = R['t0'], R['t1'], R['t2']; st0 = R['st0']
    aaddr = V(); baddr = V()
    A(f"  v_and_b32 v{t0}, 3, v{lane}")
    A(f"  v_add_u32 v{t0}, 1, v{t0}")
    A(f"  v_lshrrev_b32 v{t1}, 2, v{t0}")
    A(f"  v_and_b32 v{t0}, 3, v{t0}")
    A(f"  v_mul_u32_u24 v{t0}, {ACOPY}, v{t0}")
    A(f"  v_bfe_u32 v{t2}, v{lane}, 2, 2")
    A(f"  v_add_u32 v{t1}, v{t1}, v{t2}")
    A(f"  v_lshrrev_b32 v{t2}, 4, v{lane}")
    A(f"  v_add_u32 v{t1}, v{t1}, v{t2}")
    A(f"  v_lshl_add_u32 v{t0}, v{t1}, 4, v{t0}")
    A(f"  s_lshl_b32 s{st0}, s{s_hw}, 8")
    A(f"  s_add_u32 s{st0}, s{st0}, s{s_lb}")
    A(f"  v_add_u32 v{aaddr}, s{st0}, v{t0}")
    A(f"  v_and_b32 v{t0}, 1, v{lane}")
    A(f"  v_mul_u32_u24 v{t0}, {BCOPY}, v{t0}")
    A(f"  v_bfe_u32 v{t1}, v{lane}, 1, 3")
    A(f"  v_lshlrev_b32 v{t1}, 6, v{t1}")
    A(f"  v_sub_u32 v{t0}, v{t0}, v{t1}")
    A(f"  v_lshl_add_u32 v{t0}, v{t2}, 4, v{t0}")
    A(f"  s_add_u32 s{st0}, s{st0}, {BOFF + 448}")
    A(f"  v_add_u32 v{baddr}, s{st0}, v{t0}")
    acc = V(32, 4); AF = V(64, 4); BF = V(64, 4); AD = V(4, 4)
    for i in range(32): A(f"  v_mov_b32 v{acc+i}, 0")
    A(f"  s_and_b32 s{st0}, s{s_d}, 1")
    A(f"  s_lshl_b32 s{st0}, s{st0}, 4")
    A(f"  s_lshr_b32 s{s_D}, s{s_D}, s{st0}")
    A(f"  s_and_b32 s{s_D}, s{s_D}, 0xffff")
    A(f"  v_and_b32 v{t0}, 3, v{lane}")
    A(f"  v_lshlrev_b32 v{t0}, 1, v{t0}")
    A(f"  v_bfe_u32 v{t1}, v{lane}, 2, 2")
    A(f"  v_lshl_add_u32 v{t0}, v{t1}, 3, v{t0}")
    A(f"  v_lshl_add_u32 v{t0}, v{t2}, 3, v{t0}")
    A(f"  v_sub_u32 v{t0}, 30, v{t0}")
    A(f"  v_mov_b32 v{t1}, s{s_D}")
    for i in range(4):
        A(f"  v_cmp_eq_u32 vcc, {2*i}, v{t0}")
        A(f"  s_nop 1")
        A(f"  v_cndmask_b32 v{AD+i}, 0, v{t1}, vcc")
    A(f"  s_cmp_eq_u32 s{s_hw}, 0")
    A(f"  s_cselect_b32 s{st0}, -1, 0")
    for i in range(4): A(f"  v_and_b32 v{AD+i}, s{st0}, v{AD+i}")
    A(f"  s_waitcnt lgkmcnt(0)")
    A(f"  s_barrier")
    if start_hook: start_hook()
    def reads(kp):
        par = kp % 2
        L = []
        order = [('B', 0), ('A', 0)] + [x for i in range(1, 8) for x in (('B', i), ('A', i))]
        for (w, i) in order:
            if w == 'B': L.append(f"  ds_read_b128 {v(BF+32*par+4*i,4)}, v{baddr} offset:{512*(7-i) + 64*kp}")
            else:        L.append(f"  ds_read_b128 {v(AF+32*par+4*i,4)}, v{aaddr} offset:{512*i + 64*kp}")
        return L
    r0 = reads(0)
    for l in r0[:8]: A(l)
    A(f"  s_waitcnt lgkmcnt(4)")
    for l in r0[8:]: A(l)
    for kp in range(4):
        par = kp % 2
        A(f"  s_waitcnt lgkmcnt(0)")
        nr = reads(kp + 1) if kp < 3 else []
        mf = []
        for a_ in range(8):
            for b in range(8 - a_):
                i = a_ + b
                mf.append(f"  v_mfma_f32_16x16x32_bf16 {v(acc+4*i,4)}, {v(AF+32*par+4*a_,4)}, {v(BF+32*par+4*b,4)}, {v(acc+4*i,4)}")
        if kp == 0:
            mf += [f"  v_mfma_f32_16x16x32_bf16 {v(acc+4*b,4)}, {v(AD,4)}, {v(BF+4*b,4)}, {v(acc+4*b,4)}" for b in range(8)]
        k = 0
        for i, m in enumerate(mf):
            A(m)
            if i % 2 == 1 and k < len(nr):
                A(nr[k]); k += 1
        if kp == MIDKP and mid_hook: mid_hook()
    A.nop(10)
    return acc, AF, BF

def conv_finish(A, R, acc, AF, BF, scratch, vm, store_sc):
    lane = R['lane']; t0, t1 = R['t0'], R['t1']; sw = R['s_wave']; st0, st1 = R['st0'], R['st1']; SWS = R['srd_ws']
    A(f"  s_barrier")
    A(f"  v_lshlrev_b32 v{t0}, 4, v{lane}")
    A(f"  s_lshl_b32 s{st0}, s{sw}, 12")
    A(f"  s_add_u32 s{st0}, s{st0}, {scratch}")
    A(f"  v_add_u32 v{t1}, s{st0}, v{t0}")
    Lh1 = A.uniq("cvh"); Lj = A.uniq("cvj")
    A(f"  s_cmp_lg_u32 s{s_hw}, 0")
    A(f"  s_cbranch_scc1 {Lh1}")
    for i in range(4): A(f"  ds_write_b128 v{t1}, {v(acc+16+4*i,4)} offset:{1024*i}")
    A(f"  s_branch {Lj}")
    A.label(Lh1)
    for i in range(4): A(f"  ds_write_b128 v{t1}, {v(acc+4*i,4)} offset:{1024*i}")
    A(f"  s_nop 1")
    for i in range(16): A(f"  v_mov_b32 v{acc+i}, v{acc+16+i}")
    A.label(Lj)
    A(f"  v_xor_b32 v{t1}, 4096, v{t1}")
    A(f"  v_and_b32 v{t0}, 1, v{lane}")
    A(f"  v_cmp_eq_u32 s[62:63], 1, v{t0}")
    A(f"  v_lshlrev_b32 v{t0}, 3, v{t0}")
    A(f"  v_bfe_u32 v{R['t2']}, v{lane}, 1, 3")
    A(f"  v_lshl_add_u32 v{t0}, v{R['t2']}, 6, v{t0}")
    A(f"  v_lshrrev_b32 v{R['t2']}, 4, v{lane}")
    A(f"  v_lshl_add_u32 v{t0}, v{R['t2']}, 4, v{t0}")
    A(f"  s_lshl_b32 s{st0}, s{s_d}, 12")
    A(f"  s_lshl_b32 s{st1}, s{s_hw}, 11")
    A(f"  s_add_u32 s{st0}, s{st0}, s{st1}")
    A(f"  s_add_u32 s{st0}, s{st0}, {WS_ZT}")
    A(f"  s_waitcnt lgkmcnt(0)")
    A(f"  s_barrier")
    o = AF
    for i in range(4): A(f"  ds_read_b128 {v(o+4*i,4)}, v{t1} offset:{1024*i}")
    for i in range(4):
        A(f"  s_waitcnt lgkmcnt({3-i})")
        for j in range(4): A(f"  v_add_f32 v{acc+4*i+j}, v{acc+4*i+j}, v{o+4*i+j}")
    M = "s[62:63]"
    for i in range(4):
        b = BF + 8*i
        sa, sb, xa, xb2, p0, p1 = b, b+1, b+2, b+3, b+4, b+5
        r0, r1, r2, r3 = acc+4*i, acc+4*i+1, acc+4*i+2, acc+4*i+3
        A(f"  v_cndmask_b32 v{sa}, v{r2}, v{r0}, {M}")
        A(f"  v_cndmask_b32 v{sb}, v{r3}, v{r1}, {M}")
    for i in range(4):
        b = BF + 8*i
        sa, sb, xa, xb2 = b, b+1, b+2, b+3
        A(f"  v_mov_b32_dpp v{xa}, v{sa} quad_perm:[1,0,3,2] row_mask:0xf bank_mask:0xf")
        A(f"  v_mov_b32_dpp v{xb2}, v{sb} quad_perm:[1,0,3,2] row_mask:0xf bank_mask:0xf")
    A(f"  v_and_b32 v{t1}, 0xfffff000, v{t1}")
    A(f"  v_add_u32 v{R['t2']}, v{t1}, v{t0}")
    for i in range(4):
        b = BF + 8*i
        sa, sb, xa, xb2, p0, p1 = b, b+1, b+2, b+3, b+4, b+5
        r0, r1, r2, r3 = acc+4*i, acc+4*i+1, acc+4*i+2, acc+4*i+3
        A(f"  v_cndmask_b32 v{sa}, v{r0}, v{xa}, {M}")
        A(f"  v_cndmask_b32 v{sb}, v{xa}, v{r2}, {M}")
        A(f"  v_cndmask_b32 v{r0}, v{r1}, v{xb2}, {M}")
        A(f"  v_cndmask_b32 v{r2}, v{xb2}, v{r3}, {M}")
        A(f"  v_cvt_pk_bf16_f32 v{p0}, v{sa}, v{sb}")
        A(f"  v_cvt_pk_bf16_f32 v{p1}, v{r0}, v{r2}")
        A(f"  ds_write_b64 v{R['t2']}, {v(p0,2)} offset:{512*i}")
    A(f"  v_lshlrev_b32 v{t0}, 4, v{lane}")
    A(f"  v_add_u32 v{t1}, v{t1}, v{t0}")
    A(f"  s_waitcnt lgkmcnt(0)")
    A(f"  ds_read_b128 {v(o,4)}, v{t1}")
    A(f"  ds_read_b128 {v(o+4,4)}, v{t1} offset:1024")
    A(f"  s_waitcnt lgkmcnt(1)")
    A(f"  buffer_store_dwordx4 {v(o,4)}, v{t0}, s[{SWS}:{SWS+3}], s{st0} offen{store_sc}"); vm.issue("zst")
    A(f"  s_waitcnt lgkmcnt(0)")
    A(f"  buffer_store_dwordx4 {v(o+4,4)}, v{t0}, s[{SWS}:{SWS+3}], s{st0} offen offset:1024{store_sc}"); vm.issue("zst")


def conv_main3(A, R, lg, vm, w_step, start_hook, ST, nw=32, kp2_hook=None):
    lane = R['lane']; t0, t1, t2 = R['t0'], R['t1'], R['t2']; st0 = R['st0']
    acc, AF, BF, AD, aaddr, baddr = 20, 52, 84, 116, 120, 121
    A(f"  v_and_b32 v{t0}, 3, v{lane}")
    A(f"  v_add_u32 v{t0}, 1, v{t0}")
    A(f"  v_lshrrev_b32 v{t1}, 2, v{t0}")
    A(f"  v_and_b32 v{t0}, 3, v{t0}")
    A(f"  v_mul_u32_u24 v{t0}, {ACOPY}, v{t0}")
    A(f"  v_bfe_u32 v{t2}, v{lane}, 2, 2")
    A(f"  v_add_u32 v{t1}, v{t1}, v{t2}")
    A(f"  v_lshrrev_b32 v{t2}, 4, v{lane}")
    A(f"  v_add_u32 v{t1}, v{t1}, v{t2}")
    A(f"  v_lshl_add_u32 v{t0}, v{t1}, 4, v{t0}")
    A(f"  s_lshl_b32 s{st0}, s{s_hw}, 8")
    A(f"  s_add_u32 s{st0}, s{st0}, s{s_lb}")
    A(f"  v_add_u32 v{aaddr}, s{st0}, v{t0}")
    A(f"  v_and_b32 v{t0}, 1, v{lane}")
    A(f"  v_mul_u32_u24 v{t0}, {BCOPY}, v{t0}")
    A(f"  v_bfe_u32 v{t1}, v{lane}, 1, 3")
    A(f"  v_lshlrev_b32 v{t1}, 6, v{t1}")
    A(f"  v_sub_u32 v{t0}, v{t0}, v{t1}")
    A(f"  v_lshl_add_u32 v{t0}, v{t2}, 4, v{t0}")
    A(f"  s_add_u32 s{st0}, s{st0}, {BOFF + 448}")
    A(f"  v_add_u32 v{baddr}, s{st0}, v{t0}")
    for i in range(32): A(f"  v_mov_b32 v{acc+i}, 0")
    A(f"  s_and_b32 s{st0}, s{s_d}, 1")
    A(f"  s_lshl_b32 s{st0}, s{st0}, 4")
    A(f"  s_lshr_b32 s{s_D}, s{s_D}, s{st0}")
    A(f"  s_and_b32 s{s_D}, s{s_D}, 0xffff")
    A(f"  s_cmp_eq_u32 s{s_hw}, 0")
    A(f"  s_cselect_b32 s{s_D}, s{s_D}, 0")
    A(f"  v_and_b32 v{t0}, 3, v{lane}")
    A(f"  v_lshlrev_b32 v{t0}, 1, v{t0}")
    A(f"  v_bfe_u32 v{t1}, v{lane}, 2, 2")
    A(f"  v_lshl_add_u32 v{t0}, v{t1}, 3, v{t0}")
    A(f"  v_lshl_add_u32 v{t0}, v{t2}, 3, v{t0}")
    A(f"  v_sub_u32 v{t0}, 30, v{t0}")
    A(f"  v_mov_b32 v{t1}, s{s_D}")
    for i in range(4):
        A(f"  v_cmp_eq_u32 vcc, {2*i}, v{t0}")
        A(f"  s_nop 1")
        A(f"  v_cndmask_b32 v{AD+i}, 0, v{t1}, vcc")
    vm.wait(A, "Ost")
    A(f"  s_waitcnt lgkmcnt(0)")
    A(f"  s_barrier")
    start_hook()
    PRIO = int(os.environ.get('CPRIO', '3'))
    def setp(lo, hi):
        L1 = A.uniq("sp"); L2 = A.uniq("sp")
        A(f"  s_cmp_ge_u32 s{R['s_wave']}, 4")
        A(f"  s_cbranch_scc1 {L1}")
        A(f"  s_setprio {lo}")
        A(f"  s_branch {L2}")
        A.label(L1)
        A(f"  s_setprio {hi}")
        A.label(L2)
    if PRIO < 4: setp(2, 1)
    def rdA(kp, a_):
        A(f"  ds_read_b128 {v(AF+4*a_,4)}, v{aaddr} offset:{512*a_ + 64*kp}"); lg.issue(f"A{a_}")
    def rdB(kp, b):
        A(f"  ds_read_b128 {v(BF+4*b,4)}, v{baddr} offset:{512*(7-b) + 64*kp}"); lg.issue(f"B{b}")
    rdB(0, 0); rdA(0, 7); rdA(0, 6); rdB(0, 1); rdA(0, 5); rdB(0, 2); rdA(0, 4); rdB(0, 3)
    lg.wait(A, "A7")
    rest0 = [('A', 3), ('B', 4), ('A', 2), ('B', 5), ('A', 1), ('B', 6), ('A', 0), ('B', 7)]
    nm = 0; wi = 0; pend2 = None
    total = 4*36 + 8
    spacing = total / (nw + 0.5)
    for kp in range(4):
        if kp == 2 and kp2_hook: kp2_hook()
        if kp == PRIO: setp(0, 1)
        for a_ in range(7, -1, -1):
            for b in range(8 - a_):
                lg.wait(A, [f"A{a_}", f"B{b}"])
                A(f"  v_mfma_f32_16x16x32_bf16 {v(acc+4*(a_+b),4)}, {v(AF+4*a_,4)}, {v(BF+4*b,4)}, {v(acc+4*(a_+b),4)}")
                nm += 1
                if kp == 0 and rest0:
                    w, i = rest0.pop(0)
                    (rdA if w == 'A' else rdB)(0, i)
                if a_ == 0:
                    if kp == 0:
                        A(f"  v_mfma_f32_16x16x32_bf16 {v(acc+4*b,4)}, {v(AD,4)}, {v(BF+4*b,4)}, {v(acc+4*b,4)}")
                        nm += 1
                    if kp < 3: rdB(kp + 1, b)
                if pend2 is not None and nm >= pend_at + 3:
                    pend2(); pend2 = None
                if wi < nw and nm >= spacing * wi + 2 and pend2 is None:
                    pend_at = nm
                    f1, f2 = w_step(wi); f1(); pend2 = f2; wi += 1
            if kp < 3: rdA(kp + 1, a_)
    if pend2: pend2()
    while wi < nw:
        f1, f2 = w_step(wi); f1(); f2(); wi += 1
    if PRIO < 4: A(f"  s_setprio 0")
    A.nop(8)
    return acc

def conv_finish3(A, R, acc, AF, BF, scratch, vm, store_sc):
    conv_finish(A, R, acc, AF, BF, scratch, vm, store_sc)


def conv_finish4(A, R, acc, AF, BF, scratch, vm, lg, store_sc, hooks, ST=None):
    ST = ST or (lambda: None)
    lane = R['lane']; t0, t1 = R['t0'], R['t1']; sw = R['s_wave']; st0, st1 = R['st0'], R['st1']; SWS = R['srd_ws']
    lg.drain(A)
    A(f"  s_barrier")
    ST()
    hooks['after_bar1']()
    ST()
    A(f"  v_lshlrev_b32 v{t0}, 4, v{lane}")
    A(f"  s_lshl_b32 s{st0}, s{sw}, 12")
    A(f"  s_add_u32 s{st0}, s{st0}, {scratch}")
    A(f"  v_add_u32 v{t1}, s{st0}, v{t0}")
    Lh1 = A.uniq("cvh"); Lj = A.uniq("cvj")
    A(f"  s_cmp_lg_u32 s{s_hw}, 0")
    A(f"  s_cbranch_scc1 {Lh1}")
    for i in range(4): A(f"  ds_write_b128 v{t1}, {v(acc+16+4*i,4)} offset:{1024*i}")
    A(f"  s_branch {Lj}")
    A.label(Lh1)
    for i in range(4): A(f"  ds_write_b128 v{t1}, {v(acc+4*i,4)} offset:{1024*i}")
    A(f"  s_nop 1")
    for i in range(16): A(f"  v_mov_b32 v{acc+i}, v{acc+16+i}")
    A.label(Lj)
    for i in range(4): lg.issue("xw")
    A(f"  v_xor_b32 v{t1}, 4096, v{t1}")
    tz = BF + 30
    A(f"  v_and_b32 v{t0}, 1, v{lane}")
    A(f"  v_cmp_eq_u32 s[62:63], 1, v{t0}")
    A(f"  v_lshlrev_b32 v{t0}, 3, v{t0}")
    A(f"  v_bfe_u32 v{R['t2']}, v{lane}, 1, 3")
    A(f"  v_lshl_add_u32 v{t0}, v{R['t2']}, 6, v{t0}")
    A(f"  v_lshrrev_b32 v{R['t2']}, 4, v{lane}")
    A(f"  v_lshl_add_u32 v{tz}, v{R['t2']}, 4, v{t0}")
    tx = BF + 31
    A(f"  v_mov_b32 v{tx}, v{t1}")
    hooks['after_wr']()
    lg.drain(A)
    A(f"  s_barrier")
    ST()
    o = AF
    for i in range(4):
        A(f"  ds_read_b128 {v(o+4*i,4)}, v{tx} offset:{1024*i}"); lg.issue(f"xr{i}")
    hooks['after_bar2']()
    for i in range(4):
        lg.wait(A, f"xr{i}")
        for j in range(4): A(f"  v_add_f32 v{acc+4*i+j}, v{acc+4*i+j}, v{o+4*i+j}")
    ST()
    hooks['after_add']()
    ST()
    M = "s[62:63]"
    for i in range(4):
        b = BF + 6*i
        r0, r1, r2, r3 = acc+4*i, acc+4*i+1, acc+4*i+2, acc+4*i+3
        A(f"  v_cndmask_b32 v{b}, v{r2}, v{r0}, {M}")
        A(f"  v_cndmask_b32 v{b+1}, v{r3}, v{r1}, {M}")
    for i in range(4):
        b = BF + 6*i
        A(f"  v_mov_b32_dpp v{b+2}, v{b} quad_perm:[1,0,3,2] row_mask:0xf bank_mask:0xf")
        A(f"  v_mov_b32_dpp v{b+3}, v{b+1} quad_perm:[1,0,3,2] row_mask:0xf bank_mask:0xf")
    A(f"  v_and_b32 v{tx}, 0xfffff000, v{tx}")
    A(f"  v_add_u32 v{tz}, v{tx}, v{tz}")
    for i in range(4):
        b = BF + 6*i
        sa, sb, xa, xb2, p0 = b, b+1, b+2, b+3, b+4
        r0, r1, r2, r3 = acc+4*i, acc+4*i+1, acc+4*i+2, acc+4*i+3
        A(f"  v_cndmask_b32 v{sa}, v{r0}, v{xa}, {M}")
        A(f"  v_cndmask_b32 v{sb}, v{xa}, v{r2}, {M}")
        A(f"  v_cndmask_b32 v{r0}, v{r1}, v{xb2}, {M}")
        A(f"  v_cndmask_b32 v{r2}, v{xb2}, v{r3}, {M}")
        A(f"  v_cvt_pk_bf16_f32 v{p0}, v{sa}, v{sb}")
        A(f"  v_cvt_pk_bf16_f32 v{p0+1}, v{r0}, v{r2}")
        A(f"  ds_write_b64 v{tz}, {v(p0,2)} offset:{512*i}"); lg.issue("zw")
    hooks['after_pack']()
    A(f"  v_lshlrev_b32 v{t0}, 4, v{lane}")
    A(f"  v_add_u32 v{tx}, v{tx}, v{t0}")
    lg.wait(A, "zw")
    A(f"  ds_read_b128 {v(o,4)}, v{tx}"); lg.issue("zr0")
    A(f"  ds_read_b128 {v(o+4,4)}, v{tx} offset:1024"); lg.issue("zr1")
    A(f"  s_lshl_b32 s{st0}, s{s_d}, 12")
    A(f"  s_lshl_b32 s{st1}, s{s_hw}, 11")
    A(f"  s_add_u32 s{st0}, s{st0}, s{st1}")
    A(f"  s_add_u32 s{st0}, s{st0}, {WS_ZT}")
    lg.wait(A, "zr0")
    A(f"  buffer_store_dwordx4 {v(o,4)}, v{t0}, s[{SWS}:{SWS+3}], s{st0} offen{store_sc}"); vm.issue("zst")
    lg.wait(A, "zr1")
    A(f"  buffer_store_dwordx4 {v(o+4,4)}, v{t0}, s[{SWS}:{SWS+3}], s{st0} offen offset:1024{store_sc}"); vm.issue("zst")


def conv_main5(A, R, lg0, vm, make_w, start_hook, kp2_hook, after_main, store_sc):
    import copy
    from g4 import LG
    lane = R['lane']; t0, t1, t2, t3 = R['t0'], R['t1'], R['t2'], R['t3']; st0, st1 = R['st0'], R['st1']; SWS = R['srd_ws']
    acc, AF, BF, AD, aaddr, baddr = 20, 52, 84, 116, 120, 121
    A(f"  v_and_b32 v{t0}, 3, v{lane}")
    A(f"  v_add_u32 v{t0}, 1, v{t0}")
    A(f"  v_lshrrev_b32 v{t1}, 2, v{t0}")
    A(f"  v_and_b32 v{t0}, 3, v{t0}")
    A(f"  v_mul_u32_u24 v{t0}, {ACOPY}, v{t0}")
    A(f"  v_bfe_u32 v{t2}, v{lane}, 2, 2")
    A(f"  v_add_u32 v{t1}, v{t1}, v{t2}")
    A(f"  v_lshrrev_b32 v{t2}, 4, v{lane}")
    A(f"  v_add_u32 v{t1}, v{t1}, v{t2}")
    A(f"  v_lshl_add_u32 v{t0}, v{t1}, 4, v{t0}")
    A(f"  v_add_u32 v{aaddr}, s{s_lb}, v{t0}")
    A(f"  v_and_b32 v{t0}, 1, v{lane}")
    A(f"  v_mul_u32_u24 v{t0}, {BCOPY}, v{t0}")
    A(f"  v_bfe_u32 v{t1}, v{lane}, 1, 3")
    A(f"  v_lshlrev_b32 v{t1}, 6, v{t1}")
    A(f"  v_sub_u32 v{t0}, v{t0}, v{t1}")
    A(f"  v_lshl_add_u32 v{t0}, v{t2}, 4, v{t0}")
    A(f"  s_add_u32 s{st0}, s{s_lb}, {BOFF + 448}")
    A(f"  v_add_u32 v{baddr}, s{st0}, v{t0}")
    for i in range(16): A(f"  v_mov_b32 v{acc+i}, 0")
    A(f"  s_and_b32 s{st0}, s{s_d}, 1")
    A(f"  s_lshl_b32 s{st0}, s{st0}, 4")
    A(f"  s_lshr_b32 s{s_D}, s{s_D}, s{st0}")
    A(f"  s_and_b32 s{s_D}, s{s_D}, 0xffff")
    A(f"  v_and_b32 v{t0}, 3, v{lane}")
    A(f"  v_lshlrev_b32 v{t0}, 1, v{t0}")
    A(f"  v_bfe_u32 v{t1}, v{lane}, 2, 2")
    A(f"  v_lshl_add_u32 v{t0}, v{t1}, 3, v{t0}")
    A(f"  v_lshl_add_u32 v{t0}, v{t2}, 3, v{t0}")
    A(f"  v_sub_u32 v{t0}, 30, v{t0}")
    A(f"  v_mov_b32 v{t1}, s{s_D}")
    for i in range(4):
        A(f"  v_cmp_eq_u32 vcc, {2*i}, v{t0}")
        A(f"  s_nop 1")
        A(f"  v_cndmask_b32 v{AD+i}, 0, v{t1}, vcc")
    vm.wait(A, "Ost")
    A(f"  s_waitcnt lgkmcnt(0)")
    A(f"  s_barrier")
    start_hook()
    TT = [[0, 3, 4, 7], [1, 2, 5, 6]]
    Lh1 = A.uniq("cm1"); Lj = A.uniq("cmj")
    A(f"  s_cmp_lg_u32 s{s_hw}, 0")
    A(f"  s_cbranch_scc1 {Lh1}")
    vm_states = []
    for hw in range(2):
        if hw == 1: A.label(Lh1)
        T = TT[hw]
        lg = LG(); vmx = copy.deepcopy(vm)
        w_step = make_w(lg, vmx)
        pairs = [(a_, b) for a_ in range(7, -1, -1) for b in range(8) if a_ + b in T]
        lastA = {}; lastB = {}
        for n, (a_, b) in enumerate(pairs): lastA[a_] = n; lastB[b] = n
        def rdA(kp, a_):
            A(f"  ds_read_b128 {v(AF+4*a_,4)}, v{aaddr} offset:{512*a_ + 64*kp}"); lg.issue(f"A{a_}")
        def rdB(kp, b):
            A(f"  ds_read_b128 {v(BF+4*b,4)}, v{baddr} offset:{512*(7-b) + 64*kp}"); lg.issue(f"B{b}")
        order = []
        for (a_, b) in pairs:
            if ('A', a_) not in order: order.append(('A', a_))
            if ('B', b) not in order: order.append(('B', b))
        init = order[:8]; rest0 = order[8:]
        for w, i in init: (rdA if w == 'A' else rdB)(0, i)
        nm = 0; wi = 0; pend2 = None; pend_at = 0
        total = 8*len(pairs) + 4
        spacing = (total - 8) / 32.0
        for kp in range(8):
            if kp == 5 and kp2_hook: kp2_hook(vmx)
            for n, (a_, b) in enumerate(pairs):
                while kp == 0 and rest0 and (('A', a_) in rest0 or ('B', b) in rest0):
                    w, i = rest0.pop(0); (rdA if w == 'A' else rdB)(0, i)
                lg.wait(A, [f"A{a_}", f"B{b}"])
                ti = T.index(a_ + b)
                A(f"  v_mfma_f32_16x16x32_bf16 {v(acc+4*ti,4)}, {v(AF+4*a_,4)}, {v(BF+4*b,4)}, {v(acc+4*ti,4)}")
                nm += 1
                if kp == 0 and rest0:
                    w, i = rest0.pop(0); (rdA if w == 'A' else rdB)(0, i)
                if kp == 0 and a_ == 0:
                    A(f"  v_mfma_f32_16x16x32_bf16 {v(acc+4*ti,4)}, {v(AD,4)}, {v(BF+4*b,4)}, {v(acc+4*ti,4)}")
                    nm += 1
                if kp < 7:
                    if lastA[a_] == n: rdA(kp + 1, a_)
                    if lastB[b] == n: rdB(kp + 1, b)
                if pend2 is not None and nm >= pend_at + 3:
                    pend2(); pend2 = None
                if wi < 32 and nm >= spacing * wi + 2 and pend2 is None:
                    pend_at = nm
                    f1, f2 = w_step(wi); f1(); pend2 = f2; wi += 1
        if pend2: pend2()
        while wi < 32:
            f1, f2 = w_step(wi); f1(); f2(); wi += 1
        lg.drain(A)
        A.nop(8)
        M = "s[62:63]"
        PR = R['s_priv']
        A(f"  v_and_b32 v{t0}, 1, v{lane}")
        A(f"  v_cmp_eq_u32 {M}, 1, v{t0}")
        A(f"  v_lshlrev_b32 v{t0}, 3, v{t0}")
        A(f"  v_bfe_u32 v{t2}, v{lane}, 1, 3")
        A(f"  v_lshl_add_u32 v{t0}, v{t2}, 6, v{t0}")
        A(f"  v_lshrrev_b32 v{t2}, 4, v{lane}")
        A(f"  v_lshl_add_u32 v{t0}, v{t2}, 4, v{t0}")
        A(f"  v_add_u32 v{t1}, s{PR}, v{t0}")
        for i in range(4):
            b = BF + 6*i
            r0, r1, r2, r3 = acc+4*i, acc+4*i+1, acc+4*i+2, acc+4*i+3
            A(f"  v_cndmask_b32 v{b}, v{r2}, v{r0}, {M}")
            A(f"  v_cndmask_b32 v{b+1}, v{r3}, v{r1}, {M}")
        for i in range(4):
            b = BF + 6*i
            A(f"  v_mov_b32_dpp v{b+2}, v{b} quad_perm:[1,0,3,2] row_mask:0xf bank_mask:0xf")
            A(f"  v_mov_b32_dpp v{b+3}, v{b+1} quad_perm:[1,0,3,2] row_mask:0xf bank_mask:0xf")
        for i in range(4):
            b = BF + 6*i
            sa, sb, xa, xb2, p0 = b, b+1, b+2, b+3, b+4
            r0, r1, r2, r3 = acc+4*i, acc+4*i+1, acc+4*i+2, acc+4*i+3
            A(f"  v_cndmask_b32 v{sa}, v{r0}, v{xa}, {M}")
            A(f"  v_cndmask_b32 v{sb}, v{xa}, v{r2}, {M}")
            A(f"  v_cndmask_b32 v{r0}, v{r1}, v{xb2}, {M}")
            A(f"  v_cndmask_b32 v{r2}, v{xb2}, v{r3}, {M}")
            A(f"  v_cvt_pk_bf16_f32 v{p0}, v{sa}, v{sb}")
            A(f"  v_cvt_pk_bf16_f32 v{p0+1}, v{r0}, v{r2}")
            A(f"  ds_write_b64 v{t1}, {v(p0,2)} offset:{512*i}")
        o = AF
        A(f"  v_and_b32 v{t0}, 31, v{lane}")
        A(f"  v_lshlrev_b32 v{t0}, 4, v{t0}")
        A(f"  v_lshrrev_b32 v{t2}, 5, v{lane}")
        for j in range(2):
            A(f"  v_mul_u32_u24 v{o+8+j}, {(T[2*j+1]-T[2*j])*512}, v{t2}")
            A(f"  v_add_u32 v{o+8+j}, v{o+8+j}, v{t0}")
            A(f"  v_add_u32 v{o+8+j}, {T[2*j]*512}, v{o+8+j}")
        A(f"  v_lshlrev_b32 v{t0}, 4, v{lane}")
        A(f"  v_add_u32 v{t1}, s{PR}, v{t0}")
        A(f"  s_lshl_b32 s{st0}, s{s_d}, 12")
        A(f"  s_add_u32 s{st0}, s{st0}, {WS_ZT}")
        A(f"  s_waitcnt lgkmcnt(0)")
        A(f"  ds_read_b128 {v(o,4)}, v{t1}")
        A(f"  ds_read_b128 {v(o+4,4)}, v{t1} offset:1024")
        vm_states.append(vmx)
        if hw == 0: A(f"  s_branch {Lj}")
    A.label(Lj)
    assert vm_states[0].ops == vm_states[1].ops, (vm_states[0].ops, vm_states[1].ops)
    vm.ops = vm_states[0].ops
    after_main()
    A(f"  s_waitcnt lgkmcnt(1)")
    A(f"  buffer_store_dwordx4 {v(AF,4)}, v{AF+8}, s[{SWS}:{SWS+3}], s{st0} offen{store_sc}"); vm.issue("zst")
    A(f"  s_waitcnt lgkmcnt(0)")
    A(f"  buffer_store_dwordx4 {v(AF+4,4)}, v{AF+9}, s[{SWS}:{SWS+3}], s{st0} offen{store_sc}"); vm.issue("zst")
```

```python
from common import *
import os
MIDKP = int(os.environ.get('MIDKP', '2'))
ACOPY = 4160
BOFF = 16640
BCOPY = 4640
CH_BASE = [0, 65536, 91456, 117376]
SF, SX = 8, 12
s_ch, s_hw, s_d, s_lb, s_D = 16, 17, 18, 19, 94

def conv_setup(A, R, V, C=None):
    lane = R['lane']; t0, t1, t2 = R['t0'], R['t1'], R['t2']
    sw = R['s_wave']; st0 = R['st0']
    A(f"  s_lshr_b32 s{s_ch}, s{sw}, 1")
    A(f"  s_and_b32 s{s_hw}, s{sw}, 1")
    A(f"  s_lshl_b32 s{s_d}, s{R['s_lid']}, 2")
    A(f"  s_add_u32 s{s_d}, s{s_d}, s{s_ch}")
    A(f"  s_lshl_b32 s{st0}, s{s_d}, 12")
    A(f"  s_add_u32 s{SF}, s{ptr('ssmk')}, s{st0}")
    A(f"  s_addc_u32 s{SF+1}, s{ptr('ssmk')+1}, 0")
    A(f"  s_mov_b32 s{SF+2}, 4096")
    A(f"  s_mov_b32 s{SF+3}, 0x20000")
    A(f"  s_add_u32 s{st0}, s{st0}, {WS_KVT}")
    A(f"  s_add_u32 s{SX}, s{ptr('ws')}, s{st0}")
    A(f"  s_addc_u32 s{SX+1}, s{ptr('ws')+1}, 0")
    A(f"  s_mov_b32 s{SX+2}, 4096")
    A(f"  s_mov_b32 s{SX+3}, 0x20000")
    A(f"  s_mul_i32 s{s_lb}, s{s_ch}, 25920")
    A(f"  s_add_u32 s{s_lb}, s{s_lb}, {65536 - 25920}")
    A(f"  s_cmp_eq_u32 s{s_ch}, 0")
    A(f"  s_cselect_b32 s{s_lb}, 0, s{s_lb}")
    if C is None:
        C = {}
        C['vneg'] = V(); C['q16'] = V(); C['xb'] = V(12, 4); C['xe'] = V(3); C['pk'] = V(); C['pka'] = V(); C['pko'] = V()
    A(f"  v_lshlrev_b32 v{t0}, 4, v{lane}")
    A(f"  v_add_u32 v{C['vneg']}, -64, v{t0}")
    A(f"  s_lshl_b32 s{st0}, s{s_hw}, 10")
    A(f"  v_add_u32 v{C['q16']}, s{st0}, v{t0}")
    A(f"  v_cmp_le_u32 vcc, 1, v{lane}")
    A(f"  v_mov_b32 v{t0}, 1")
    A(f"  v_mov_b32 v{t1}, 0")
    A(f"  v_addc_co_u32 v{t0}, vcc, 0, v{t0}, vcc")
    A(f"  v_cmp_le_u32 vcc, 1, v{lane}")
    A(f"  s_nop 1")
    A(f"  v_cndmask_b32 v{t1}, 0, 1, vcc")
    A(f"  v_cmp_le_u32 vcc, 3, v{lane}")
    A(f"  s_nop 1")
    A(f"  v_addc_co_u32 v{t0}, vcc, 0, v{t0}, vcc")
    A(f"  v_cmp_le_u32 vcc, 3, v{lane}")
    A(f"  s_nop 1")
    A(f"  v_cndmask_b32 v{t1}, v{t1}, 3, vcc")
    A(f"  v_sub_u32 v{t1}, v{lane}, v{t1}")
    A(f"  v_sub_u32 v{t2}, v{t1}, v{t0}")
    A(f"  v_add_u32 v{t2}, 4, v{t2}")
    A(f"  v_lshlrev_b32 v{t2}, 2, v{t2}")
    A(f"  v_mul_u32_u24 v{C['pka']}, {ACOPY}, v{t0}")
    A(f"  v_add_u32 v{C['pka']}, v{C['pka']}, v{t2}")
    A(f"  v_add_u32 v{C['pka']}, 48, v{C['pka']}")
    A(f"  v_add_u32 v{C['pka']}, s{s_lb}, v{C['pka']}")
    A(f"  v_lshlrev_b32 v{C['pko']}, 2, v{t1}")
    A(f"  v_lshrrev_b32 v{t0}, 1, v{t0}")
    A(f"  v_cmp_eq_u32 vcc, s{s_hw}, v{t0}")
    A(f"  s_nop 1")
    A(f"  s_and_b64 s[26:27], vcc, 0x3f")
    return C

def conv_prefetch_groups(R, C, nt=""):
    st0 = 38
    lane16 = R['dmaoff']
    G = []
    for p in range(3):
        G.append(([f"  s_movk_i32 s{st0}, {2048*p}",
                   f"  buffer_load_dwordx4 {v(C['xb']+4*p,4)}, v{C['q16']}, s[{SX}:{SX+3}], s{st0} offen",
                   f"  buffer_load_dword v{C['xe']+p}, v{C['q16']}, s[{SX}:{SX+3}], s{st0} offen offset:16"], ["cB", "cB"]))
    G.append(([f"  buffer_load_dword v{C['pk']}, v{C['pko']}, s[{SF}:{SF+3}], 0 offen"], ["cP"]))
    first = [f"  s_mul_i32 s39, s{s_hw}, {2*ACOPY}", f"  s_add_u32 s39, s39, s{s_lb}", f"  s_lshl_b32 s61, s{s_hw}, 3"]
    for cc in range(2):
        for j in range(5):
            L = list(first); first = []
            L.append(f"  s_add_u32 m0, s39, {cc*ACOPY + 1024*j}")
            if j == 0:
                L.append(f"  s_add_u32 s{st0}, s61, {4*cc}")
                L.append(f"  buffer_load_dwordx4 v{C['vneg']}, s[{SF}:{SF+3}], s{st0} offen{nt} lds")
            else:
                L.append(f"  s_add_u32 s{st0}, s61, {1024*j + 4*cc - 64}")
                if j == 4: L.append(f"  s_mov_b64 exec, 0xf")
                L.append(f"  buffer_load_dwordx4 v{lane16}, s[{SF}:{SF+3}], s{st0} offen{nt} lds")
                if j == 4: L.append(f"  s_mov_b64 exec, -1")
            G.append((L, ["cA"]))
    return G

def conv_build(A, R, V, C, vm):
    t0, t1 = R['t0'], R['t1']
    tmp = V(4, 4)
    vm.wait(A, ["cB", "cP", "cA"])
    A(f"  v_add_u32 v{t1}, s{s_lb}, v{C['q16']}")
    for p in range(3):
        X = C['xb'] + 4*p
        if p == 2:
            A(f"  v_cmp_gt_u32 vcc, {28*16}, v{C['q16']}")
            A(f"  s_and_saveexec_b64 s[62:63], vcc")
            Ls = A.uniq("cvb")
            A(f"  s_cbranch_execz {Ls}")
        A(f"  ds_write_b128 v{t1}, {v(X,4)} offset:{BOFF + BCOPY + 2048*p}")
        A(f"  v_alignbit_b32 v{tmp}, v{X+1}, v{X}, 16")
        A(f"  v_alignbit_b32 v{tmp+1}, v{X+2}, v{X+1}, 16")
        A(f"  v_alignbit_b32 v{tmp+2}, v{X+3}, v{X+2}, 16")
        A(f"  v_alignbit_b32 v{tmp+3}, v{C['xe']+p}, v{X+3}, 16")
        A(f"  ds_write_b128 v{t1}, {v(tmp,4)} offset:{BOFF + 2048*p}")
        A(f"  s_nop 1")
        if p == 2:
            A.label(Ls)
            A(f"  s_mov_b64 exec, s[62:63]")
    Lp = A.uniq("cvp")
    A(f"  s_cmp_eq_u64 s[26:27], 0")
    A(f"  s_cbranch_scc1 {Lp}")
    A(f"  s_mov_b64 exec, s[26:27]")
    A(f"  ds_write_b32 v{C['pka']}, v{C['pk']}")
    A(f"  s_mov_b64 exec, -1")
    A.label(Lp)

def conv_main(A, R, V, mid_hook=None, start_hook=None):
    lane = R['lane']; t0, t1, t2 = R['t0'], R['t1'], R['t2']; st0 = R['st0']
    aaddr = V(); baddr = V()
    A(f"  v_and_b32 v{t0}, 3, v{lane}")
    A(f"  v_add_u32 v{t0}, 1, v{t0}")
    A(f"  v_lshrrev_b32 v{t1}, 2, v{t0}")
    A(f"  v_and_b32 v{t0}, 3, v{t0}")
    A(f"  v_mul_u32_u24 v{t0}, {ACOPY}, v{t0}")
    A(f"  v_bfe_u32 v{t2}, v{lane}, 2, 2")
    A(f"  v_add_u32 v{t1}, v{t1}, v{t2}")
    A(f"  v_lshrrev_b32 v{t2}, 4, v{lane}")
    A(f"  v_add_u32 v{t1}, v{t1}, v{t2}")
    A(f"  v_lshl_add_u32 v{t0}, v{t1}, 4, v{t0}")
    A(f"  s_lshl_b32 s{st0}, s{s_hw}, 8")
    A(f"  s_add_u32 s{st0}, s{st0}, s{s_lb}")
    A(f"  v_add_u32 v{aaddr}, s{st0}, v{t0}")
    A(f"  v_and_b32 v{t0}, 1, v{lane}")
    A(f"  v_mul_u32_u24 v{t0}, {BCOPY}, v{t0}")
    A(f"  v_bfe_u32 v{t1}, v{lane}, 1, 3")
    A(f"  v_lshlrev_b32 v{t1}, 6, v{t1}")
    A(f"  v_sub_u32 v{t0}, v{t0}, v{t1}")
    A(f"  v_lshl_add_u32 v{t0}, v{t2}, 4, v{t0}")
    A(f"  s_add_u32 s{st0}, s{st0}, {BOFF + 448}")
    A(f"  v_add_u32 v{baddr}, s{st0}, v{t0}")
    acc = V(32, 4); AF = V(64, 4); BF = V(64, 4); AD = V(4, 4)
    for i in range(32): A(f"  v_mov_b32 v{acc+i}, 0")
    A(f"  s_and_b32 s{st0}, s{s_d}, 1")
    A(f"  s_lshl_b32 s{st0}, s{st0}, 4")
    A(f"  s_lshr_b32 s{s_D}, s{s_D}, s{st0}")
    A(f"  s_and_b32 s{s_D}, s{s_D}, 0xffff")
    A(f"  v_and_b32 v{t0}, 3, v{lane}")
    A(f"  v_lshlrev_b32 v{t0}, 1, v{t0}")
    A(f"  v_bfe_u32 v{t1}, v{lane}, 2, 2")
    A(f"  v_lshl_add_u32 v{t0}, v{t1}, 3, v{t0}")
    A(f"  v_lshl_add_u32 v{t0}, v{t2}, 3, v{t0}")
    A(f"  v_sub_u32 v{t0}, 30, v{t0}")
    A(f"  v_mov_b32 v{t1}, s{s_D}")
    for i in range(4):
        A(f"  v_cmp_eq_u32 vcc, {2*i}, v{t0}")
        A(f"  s_nop 1")
        A(f"  v_cndmask_b32 v{AD+i}, 0, v{t1}, vcc")
    A(f"  s_cmp_eq_u32 s{s_hw}, 0")
    A(f"  s_cselect_b32 s{st0}, -1, 0")
    for i in range(4): A(f"  v_and_b32 v{AD+i}, s{st0}, v{AD+i}")
    A(f"  s_waitcnt lgkmcnt(0)")
    A(f"  s_barrier")
    if start_hook: start_hook()
    def reads(kp):
        par = kp % 2
        L = []
        order = [('B', 0), ('A', 0)] + [x for i in range(1, 8) for x in (('B', i), ('A', i))]
        for (w, i) in order:
            if w == 'B': L.append(f"  ds_read_b128 {v(BF+32*par+4*i,4)}, v{baddr} offset:{512*(7-i) + 64*kp}")
            else:        L.append(f"  ds_read_b128 {v(AF+32*par+4*i,4)}, v{aaddr} offset:{512*i + 64*kp}")
        return L
    r0 = reads(0)
    for l in r0[:8]: A(l)
    A(f"  s_waitcnt lgkmcnt(4)")
    for l in r0[8:]: A(l)
    for kp in range(4):
        par = kp % 2
        A(f"  s_waitcnt lgkmcnt(0)")
        nr = reads(kp + 1) if kp < 3 else []
        mf = []
        for a_ in range(8):
            for b in range(8 - a_):
                i = a_ + b
                mf.append(f"  v_mfma_f32_16x16x32_bf16 {v(acc+4*i,4)}, {v(AF+32*par+4*a_,4)}, {v(BF+32*par+4*b,4)}, {v(acc+4*i,4)}")
        if kp == 0:
            mf += [f"  v_mfma_f32_16x16x32_bf16 {v(acc+4*b,4)}, {v(AD,4)}, {v(BF+4*b,4)}, {v(acc+4*b,4)}" for b in range(8)]
        k = 0
        for i, m in enumerate(mf):
            A(m)
            if i % 2 == 1 and k < len(nr):
                A(nr[k]); k += 1
        if kp == MIDKP and mid_hook: mid_hook()
    A.nop(10)
    return acc, AF, BF

def conv_finish(A, R, acc, AF, BF, scratch, vm, store_sc):
    lane = R['lane']; t0, t1 = R['t0'], R['t1']; sw = R['s_wave']; st0, st1 = R['st0'], R['st1']; SWS = R['srd_ws']
    A(f"  s_barrier")
    A(f"  v_lshlrev_b32 v{t0}, 4, v{lane}")
    A(f"  s_lshl_b32 s{st0}, s{sw}, 12")
    A(f"  s_add_u32 s{st0}, s{st0}, {scratch}")
    A(f"  v_add_u32 v{t1}, s{st0}, v{t0}")
    Lh1 = A.uniq("cvh"); Lj = A.uniq("cvj")
    A(f"  s_cmp_lg_u32 s{s_hw}, 0")
    A(f"  s_cbranch_scc1 {Lh1}")
    for i in range(4): A(f"  ds_write_b128 v{t1}, {v(acc+16+4*i,4)} offset:{1024*i}")
    A(f"  s_branch {Lj}")
    A.label(Lh1)
    for i in range(4): A(f"  ds_write_b128 v{t1}, {v(acc+4*i,4)} offset:{1024*i}")
    A(f"  s_nop 1")
    for i in range(16): A(f"  v_mov_b32 v{acc+i}, v{acc+16+i}")
    A.label(Lj)
    A(f"  v_xor_b32 v{t1}, 4096, v{t1}")
    A(f"  v_and_b32 v{t0}, 1, v{lane}")
    A(f"  v_cmp_eq_u32 s[62:63], 1, v{t0}")
    A(f"  v_lshlrev_b32 v{t0}, 3, v{t0}")
    A(f"  v_bfe_u32 v{R['t2']}, v{lane}, 1, 3")
    A(f"  v_lshl_add_u32 v{t0}, v{R['t2']}, 6, v{t0}")
    A(f"  v_lshrrev_b32 v{R['t2']}, 4, v{lane}")
    A(f"  v_lshl_add_u32 v{t0}, v{R['t2']}, 4, v{t0}")
    A(f"  s_lshl_b32 s{st0}, s{s_d}, 12")
    A(f"  s_lshl_b32 s{st1}, s{s_hw}, 11")
    A(f"  s_add_u32 s{st0}, s{st0}, s{st1}")
    A(f"  s_add_u32 s{st0}, s{st0}, {WS_ZT}")
    A(f"  s_waitcnt lgkmcnt(0)")
    A(f"  s_barrier")
    o = AF
    for i in range(4): A(f"  ds_read_b128 {v(o+4*i,4)}, v{t1} offset:{1024*i}")
    for i in range(4):
        A(f"  s_waitcnt lgkmcnt({3-i})")
        for j in range(4): A(f"  v_add_f32 v{acc+4*i+j}, v{acc+4*i+j}, v{o+4*i+j}")
    M = "s[62:63]"
    for i in range(4):
        b = BF + 8*i
        sa, sb, xa, xb2, p0, p1 = b, b+1, b+2, b+3, b+4, b+5
        r0, r1, r2, r3 = acc+4*i, acc+4*i+1, acc+4*i+2, acc+4*i+3
        A(f"  v_cndmask_b32 v{sa}, v{r2}, v{r0}, {M}")
        A(f"  v_cndmask_b32 v{sb}, v{r3}, v{r1}, {M}")
    for i in range(4):
        b = BF + 8*i
        sa, sb, xa, xb2 = b, b+1, b+2, b+3
        A(f"  v_mov_b32_dpp v{xa}, v{sa} quad_perm:[1,0,3,2] row_mask:0xf bank_mask:0xf")
        A(f"  v_mov_b32_dpp v{xb2}, v{sb} quad_perm:[1,0,3,2] row_mask:0xf bank_mask:0xf")
    A(f"  v_and_b32 v{t1}, 0xfffff000, v{t1}")
    A(f"  v_add_u32 v{R['t2']}, v{t1}, v{t0}")
    for i in range(4):
        b = BF + 8*i
        sa, sb, xa, xb2, p0, p1 = b, b+1, b+2, b+3, b+4, b+5
        r0, r1, r2, r3 = acc+4*i, acc+4*i+1, acc+4*i+2, acc+4*i+3
        A(f"  v_cndmask_b32 v{sa}, v{r0}, v{xa}, {M}")
        A(f"  v_cndmask_b32 v{sb}, v{xa}, v{r2}, {M}")
        A(f"  v_cndmask_b32 v{r0}, v{r1}, v{xb2}, {M}")
        A(f"  v_cndmask_b32 v{r2}, v{xb2}, v{r3}, {M}")
        A(f"  v_cvt_pk_bf16_f32 v{p0}, v{sa}, v{sb}")
        A(f"  v_cvt_pk_bf16_f32 v{p1}, v{r0}, v{r2}")
        A(f"  ds_write_b64 v{R['t2']}, {v(p0,2)} offset:{512*i}")
    A(f"  v_lshlrev_b32 v{t0}, 4, v{lane}")
    A(f"  v_add_u32 v{t1}, v{t1}, v{t0}")
    A(f"  s_waitcnt lgkmcnt(0)")
    A(f"  ds_read_b128 {v(o,4)}, v{t1}")
    A(f"  ds_read_b128 {v(o+4,4)}, v{t1} offset:1024")
    A(f"  s_waitcnt lgkmcnt(1)")
    A(f"  buffer_store_dwordx4 {v(o,4)}, v{t0}, s[{SWS}:{SWS+3}], s{st0} offen{store_sc}"); vm.issue("zst")
    A(f"  s_waitcnt lgkmcnt(0)")
    A(f"  buffer_store_dwordx4 {v(o+4,4)}, v{t0}, s[{SWS}:{SWS+3}], s{st0} offen offset:1024{store_sc}"); vm.issue("zst")


def conv_main3(A, R, lg, vm, w_step, start_hook, ST, nw=32, kp2_hook=None):
    lane = R['lane']; t0, t1, t2 = R['t0'], R['t1'], R['t2']; st0 = R['st0']
    acc, AF, BF, AD, aaddr, baddr = 20, 52, 84, 116, 120, 121
    A(f"  v_and_b32 v{t0}, 3, v{lane}")
    A(f"  v_add_u32 v{t0}, 1, v{t0}")
    A(f"  v_lshrrev_b32 v{t1}, 2, v{t0}")
    A(f"  v_and_b32 v{t0}, 3, v{t0}")
    A(f"  v_mul_u32_u24 v{t0}, {ACOPY}, v{t0}")
    A(f"  v_bfe_u32 v{t2}, v{lane}, 2, 2")
    A(f"  v_add_u32 v{t1}, v{t1}, v{t2}")
    A(f"  v_lshrrev_b32 v{t2}, 4, v{lane}")
    A(f"  v_add_u32 v{t1}, v{t1}, v{t2}")
    A(f"  v_lshl_add_u32 v{t0}, v{t1}, 4, v{t0}")
    A(f"  s_lshl_b32 s{st0}, s{s_hw}, 8")
    A(f"  s_add_u32 s{st0}, s{st0}, s{s_lb}")
    A(f"  v_add_u32 v{aaddr}, s{st0}, v{t0}")
    A(f"  v_and_b32 v{t0}, 1, v{lane}")
    A(f"  v_mul_u32_u24 v{t0}, {BCOPY}, v{t0}")
    A(f"  v_bfe_u32 v{t1}, v{lane}, 1, 3")
    A(f"  v_lshlrev_b32 v{t1}, 6, v{t1}")
    A(f"  v_sub_u32 v{t0}, v{t0}, v{t1}")
    A(f"  v_lshl_add_u32 v{t0}, v{t2}, 4, v{t0}")
    A(f"  s_add_u32 s{st0}, s{st0}, {BOFF + 448}")
    A(f"  v_add_u32 v{baddr}, s{st0}, v{t0}")
    for i in range(32): A(f"  v_mov_b32 v{acc+i}, 0")
    A(f"  s_and_b32 s{st0}, s{s_d}, 1")
    A(f"  s_lshl_b32 s{st0}, s{st0}, 4")
    A(f"  s_lshr_b32 s{st0}, s{s_D}, s{st0}")
    A(f"  s_and_b32 s{st0}, s{st0}, 0xffff")
    A(f"  s_cmp_eq_u32 s{s_hw}, 0")
    A(f"  s_cselect_b32 s{st0}, s{st0}, 0")
    A(f"  v_and_b32 v{t0}, 3, v{lane}")
    A(f"  v_lshlrev_b32 v{t0}, 1, v{t0}")
    A(f"  v_bfe_u32 v{t1}, v{lane}, 2, 2")
    A(f"  v_lshl_add_u32 v{t0}, v{t1}, 3, v{t0}")
    A(f"  v_lshl_add_u32 v{t0}, v{t2}, 3, v{t0}")
    A(f"  v_sub_u32 v{t0}, 30, v{t0}")
    A(f"  v_mov_b32 v{t1}, s{st0}")
    for i in range(4):
        A(f"  v_cmp_eq_u32 vcc, {2*i}, v{t0}")
        A(f"  s_nop 1")
        A(f"  v_cndmask_b32 v{AD+i}, 0, v{t1}, vcc")
    vm.wait(A, "Ost")
    A(f"  s_waitcnt lgkmcnt(0)")
    A(f"  s_barrier")
    start_hook()
    PRIO = int(os.environ.get('CPRIO', '3'))
    def setp(lo, hi):
        L1 = A.uniq("sp"); L2 = A.uniq("sp")
        A(f"  s_cmp_ge_u32 s{R['s_wave']}, 4")
        A(f"  s_cbranch_scc1 {L1}")
        A(f"  s_setprio {lo}")
        A(f"  s_branch {L2}")
        A.label(L1)
        A(f"  s_setprio {hi}")
        A.label(L2)
    if PRIO < 4: setp(2, 1)
    def rdA(kp, a_):
        A(f"  ds_read_b128 {v(AF+4*a_,4)}, v{aaddr} offset:{512*a_ + 64*kp}"); lg.issue(f"A{a_}")
    def rdB(kp, b):
        A(f"  ds_read_b128 {v(BF+4*b,4)}, v{baddr} offset:{512*(7-b) + 64*kp}"); lg.issue(f"B{b}")
    rdB(0, 0); rdA(0, 7); rdA(0, 6); rdB(0, 1); rdA(0, 5); rdB(0, 2); rdA(0, 4); rdB(0, 3)
    lg.wait(A, "A7")
    rest0 = [('A', 3), ('B', 4), ('A', 2), ('B', 5), ('A', 1), ('B', 6), ('A', 0), ('B', 7)]
    nm = 0; wi = 0; pend2 = None
    total = 4*36 + 8
    spacing = total / (nw + 0.5)
    for kp in range(4):
        if kp == 2 and kp2_hook: kp2_hook()
        if kp == PRIO: setp(0, 1)
        for a_ in range(7, -1, -1):
            for b in range(8 - a_):
                lg.wait(A, [f"A{a_}", f"B{b}"])
                A(f"  v_mfma_f32_16x16x32_bf16 {v(acc+4*(a_+b),4)}, {v(AF+4*a_,4)}, {v(BF+4*b,4)}, {v(acc+4*(a_+b),4)}")
                nm += 1
                if kp == 0 and rest0:
                    w, i = rest0.pop(0)
                    (rdA if w == 'A' else rdB)(0, i)
                if a_ == 0:
                    if kp == 0:
                        A(f"  v_mfma_f32_16x16x32_bf16 {v(acc+4*b,4)}, {v(AD,4)}, {v(BF+4*b,4)}, {v(acc+4*b,4)}")
                        nm += 1
                    if kp < 3: rdB(kp + 1, b)
                if pend2 is not None and nm >= pend_at + 3:
                    pend2(); pend2 = None
                if wi < nw and nm >= spacing * wi + 2 and pend2 is None:
                    pend_at = nm
                    f1, f2 = w_step(wi); f1(); pend2 = f2; wi += 1
            if kp < 3: rdA(kp + 1, a_)
    if pend2: pend2()
    while wi < nw:
        f1, f2 = w_step(wi); f1(); f2(); wi += 1
    if PRIO < 4: A(f"  s_setprio 0")
    A.nop(8)
    return acc

def conv_finish3(A, R, acc, AF, BF, scratch, vm, store_sc):
    conv_finish(A, R, acc, AF, BF, scratch, vm, store_sc)


def conv_finish4(A, R, acc, AF, BF, scratch, vm, lg, store_sc, hooks, ST=None):
    ST = ST or (lambda: None)
    lane = R['lane']; t0, t1 = R['t0'], R['t1']; sw = R['s_wave']; st0, st1 = R['st0'], R['st1']; SWS = R['srd_ws']
    lg.drain(A)
    A(f"  s_barrier")
    ST()
    hooks['after_bar1']()
    ST()
    A(f"  v_lshlrev_b32 v{t0}, 4, v{lane}")
    A(f"  s_lshl_b32 s{st0}, s{sw}, 12")
    A(f"  s_add_u32 s{st0}, s{st0}, {scratch}")
    A(f"  v_add_u32 v{t1}, s{st0}, v{t0}")
    Lh1 = A.uniq("cvh"); Lj = A.uniq("cvj")
    A(f"  s_cmp_lg_u32 s{s_hw}, 0")
    A(f"  s_cbranch_scc1 {Lh1}")
    for i in range(4): A(f"  ds_write_b128 v{t1}, {v(acc+16+4*i,4)} offset:{1024*i}")
    A(f"  s_branch {Lj}")
    A.label(Lh1)
    for i in range(4): A(f"  ds_write_b128 v{t1}, {v(acc+4*i,4)} offset:{1024*i}")
    A(f"  s_nop 1")
    for i in range(16): A(f"  v_mov_b32 v{acc+i}, v{acc+16+i}")
    A.label(Lj)
    for i in range(4): lg.issue("xw")
    A(f"  v_xor_b32 v{t1}, 4096, v{t1}")
    tz = BF + 30
    A(f"  v_and_b32 v{t0}, 1, v{lane}")
    A(f"  v_cmp_eq_u32 s[62:63], 1, v{t0}")
    A(f"  v_lshlrev_b32 v{t0}, 3, v{t0}")
    A(f"  v_bfe_u32 v{R['t2']}, v{lane}, 1, 3")
    A(f"  v_lshl_add_u32 v{t0}, v{R['t2']}, 6, v{t0}")
    A(f"  v_lshrrev_b32 v{R['t2']}, 4, v{lane}")
    A(f"  v_lshl_add_u32 v{tz}, v{R['t2']}, 4, v{t0}")
    tx = BF + 31
    A(f"  v_mov_b32 v{tx}, v{t1}")
    hooks['after_wr']()
    lg.drain(A)
    A(f"  s_barrier")
    ST()
    o = AF
    for i in range(4):
        A(f"  ds_read_b128 {v(o+4*i,4)}, v{tx} offset:{1024*i}"); lg.issue(f"xr{i}")
    hooks['after_bar2']()
    for i in range(4):
        lg.wait(A, f"xr{i}")
        for j in range(4): A(f"  v_add_f32 v{acc+4*i+j}, v{acc+4*i+j}, v{o+4*i+j}")
    ST()
    hooks['after_add']()
    ST()
    M = "s[62:63]"
    for i in range(4):
        b = BF + 6*i
        r0, r1, r2, r3 = acc+4*i, acc+4*i+1, acc+4*i+2, acc+4*i+3
        A(f"  v_cndmask_b32 v{b}, v{r2}, v{r0}, {M}")
        A(f"  v_cndmask_b32 v{b+1}, v{r3}, v{r1}, {M}")
    for i in range(4):
        b = BF + 6*i
        A(f"  v_mov_b32_dpp v{b+2}, v{b} quad_perm:[1,0,3,2] row_mask:0xf bank_mask:0xf")
        A(f"  v_mov_b32_dpp v{b+3}, v{b+1} quad_perm:[1,0,3,2] row_mask:0xf bank_mask:0xf")
    A(f"  v_and_b32 v{tx}, 0xfffff000, v{tx}")
    A(f"  v_add_u32 v{tz}, v{tx}, v{tz}")
    for i in range(4):
        b = BF + 6*i
        sa, sb, xa, xb2, p0 = b, b+1, b+2, b+3, b+4
        r0, r1, r2, r3 = acc+4*i, acc+4*i+1, acc+4*i+2, acc+4*i+3
        A(f"  v_cndmask_b32 v{sa}, v{r0}, v{xa}, {M}")
        A(f"  v_cndmask_b32 v{sb}, v{xa}, v{r2}, {M}")
        A(f"  v_cndmask_b32 v{r0}, v{r1}, v{xb2}, {M}")
        A(f"  v_cndmask_b32 v{r2}, v{xb2}, v{r3}, {M}")
        A(f"  v_cvt_pk_bf16_f32 v{p0}, v{sa}, v{sb}")
        A(f"  v_cvt_pk_bf16_f32 v{p0+1}, v{r0}, v{r2}")
        A(f"  ds_write_b64 v{tz}, {v(p0,2)} offset:{512*i}"); lg.issue("zw")
    hooks['after_pack']()
    A(f"  v_lshlrev_b32 v{t0}, 4, v{lane}")
    A(f"  v_add_u32 v{tx}, v{tx}, v{t0}")
    lg.wait(A, "zw")
    A(f"  ds_read_b128 {v(o,4)}, v{tx}"); lg.issue("zr0")
    A(f"  ds_read_b128 {v(o+4,4)}, v{tx} offset:1024"); lg.issue("zr1")
    A(f"  s_lshl_b32 s{st0}, s{s_d}, 12")
    A(f"  s_lshl_b32 s{st1}, s{s_hw}, 11")
    A(f"  s_add_u32 s{st0}, s{st0}, s{st1}")
    A(f"  s_add_u32 s{st0}, s{st0}, {WS_ZT}")
    lg.wait(A, "zr0")
    A(f"  buffer_store_dwordx4 {v(o,4)}, v{t0}, s[{SWS}:{SWS+3}], s{st0} offen{store_sc}"); vm.issue("zst")
    lg.wait(A, "zr1")
    A(f"  buffer_store_dwordx4 {v(o+4,4)}, v{t0}, s[{SWS}:{SWS+3}], s{st0} offen offset:1024{store_sc}"); vm.issue("zst")


def conv_main5(A, R, lg0, vm, make_w, start_hook, kp2_hook, after_main, store_sc):
    import copy
    from g4 import LG
    lane = R['lane']; t0, t1, t2, t3 = R['t0'], R['t1'], R['t2'], R['t3']; st0, st1 = R['st0'], R['st1']; SWS = R['srd_ws']
    acc, AF, BF, AD, aaddr, baddr = 20, 52, 84, 116, 120, 121
    A(f"  v_and_b32 v{t0}, 3, v{lane}")
    A(f"  v_add_u32 v{t0}, 1, v{t0}")
    A(f"  v_lshrrev_b32 v{t1}, 2, v{t0}")
    A(f"  v_and_b32 v{t0}, 3, v{t0}")
    A(f"  v_mul_u32_u24 v{t0}, {ACOPY}, v{t0}")
    A(f"  v_bfe_u32 v{t2}, v{lane}, 2, 2")
    A(f"  v_add_u32 v{t1}, v{t1}, v{t2}")
    A(f"  v_lshrrev_b32 v{t2}, 4, v{lane}")
    A(f"  v_add_u32 v{t1}, v{t1}, v{t2}")
    A(f"  v_lshl_add_u32 v{t0}, v{t1}, 4, v{t0}")
    A(f"  v_add_u32 v{aaddr}, s{s_lb}, v{t0}")
    A(f"  v_and_b32 v{t0}, 1, v{lane}")
    A(f"  v_mul_u32_u24 v{t0}, {BCOPY}, v{t0}")
    A(f"  v_bfe_u32 v{t1}, v{lane}, 1, 3")
    A(f"  v_lshlrev_b32 v{t1}, 6, v{t1}")
    A(f"  v_sub_u32 v{t0}, v{t0}, v{t1}")
    A(f"  v_lshl_add_u32 v{t0}, v{t2}, 4, v{t0}")
    A(f"  s_add_u32 s{st0}, s{s_lb}, {BOFF + 448}")
    A(f"  v_add_u32 v{baddr}, s{st0}, v{t0}")
    for i in range(16): A(f"  v_mov_b32 v{acc+i}, 0")
    A(f"  s_and_b32 s{st0}, s{s_d}, 1")
    A(f"  s_lshl_b32 s{st0}, s{st0}, 4")
    A(f"  s_lshr_b32 s{s_D}, s{s_D}, s{st0}")
    A(f"  s_and_b32 s{s_D}, s{s_D}, 0xffff")
    A(f"  v_and_b32 v{t0}, 3, v{lane}")
    A(f"  v_lshlrev_b32 v{t0}, 1, v{t0}")
    A(f"  v_bfe_u32 v{t1}, v{lane}, 2, 2")
    A(f"  v_lshl_add_u32 v{t0}, v{t1}, 3, v{t0}")
    A(f"  v_lshl_add_u32 v{t0}, v{t2}, 3, v{t0}")
    A(f"  v_sub_u32 v{t0}, 30, v{t0}")
    A(f"  v_mov_b32 v{t1}, s{s_D}")
    for i in range(4):
        A(f"  v_cmp_eq_u32 vcc, {2*i}, v{t0}")
        A(f"  s_nop 1")
        A(f"  v_cndmask_b32 v{AD+i}, 0, v{t1}, vcc")
    vm.wait(A, "Ost")
    A(f"  s_waitcnt lgkmcnt(0)")
    A(f"  s_barrier")
    start_hook()
    TT = [[0, 3, 4, 7], [1, 2, 5, 6]]
    Lh1 = A.uniq("cm1"); Lj = A.uniq("cmj")
    A(f"  s_cmp_lg_u32 s{s_hw}, 0")
    A(f"  s_cbranch_scc1 {Lh1}")
    vm_states = []
    for hw in range(2):
        if hw == 1: A.label(Lh1)
        T = TT[hw]
        lg = LG(); vmx = copy.deepcopy(vm)
        w_step = make_w(lg, vmx)
        pairs = [(a_, b) for a_ in range(7, -1, -1) for b in range(8) if a_ + b in T]
        lastA = {}; lastB = {}
        for n, (a_, b) in enumerate(pairs): lastA[a_] = n; lastB[b] = n
        def rdA(kp, a_):
            A(f"  ds_read_b128 {v(AF+4*a_,4)}, v{aaddr} offset:{512*a_ + 64*kp}"); lg.issue(f"A{a_}")
        def rdB(kp, b):
            A(f"  ds_read_b128 {v(BF+4*b,4)}, v{baddr} offset:{512*(7-b) + 64*kp}"); lg.issue(f"B{b}")
        order = []
        for (a_, b) in pairs:
            if ('A', a_) not in order: order.append(('A', a_))
            if ('B', b) not in order: order.append(('B', b))
        init = order[:8]; rest0 = order[8:]
        for w, i in init: (rdA if w == 'A' else rdB)(0, i)
        nm = 0; wi = 0; pend2 = None; pend_at = 0
        total = 8*len(pairs) + 4
        spacing = (total - 8) / 32.0
        for kp in range(8):
            if kp == 5 and kp2_hook: kp2_hook(vmx)
            for n, (a_, b) in enumerate(pairs):
                while kp == 0 and rest0 and (('A', a_) in rest0 or ('B', b) in rest0):
                    w, i = rest0.pop(0); (rdA if w == 'A' else rdB)(0, i)
                lg.wait(A, [f"A{a_}", f"B{b}"])
                ti = T.index(a_ + b)
                A(f"  v_mfma_f32_16x16x32_bf16 {v(acc+4*ti,4)}, {v(AF+4*a_,4)}, {v(BF+4*b,4)}, {v(acc+4*ti,4)}")
                nm += 1
                if kp == 0 and rest0:
                    w, i = rest0.pop(0); (rdA if w == 'A' else rdB)(0, i)
                if kp == 0 and a_ == 0:
                    A(f"  v_mfma_f32_16x16x32_bf16 {v(acc+4*ti,4)}, {v(AD,4)}, {v(BF+4*b,4)}, {v(acc+4*ti,4)}")
                    nm += 1
                if kp < 7:
                    if lastA[a_] == n: rdA(kp + 1, a_)
                    if lastB[b] == n: rdB(kp + 1, b)
                if pend2 is not None and nm >= pend_at + 3:
                    pend2(); pend2 = None
                if wi < 32 and nm >= spacing * wi + 2 and pend2 is None:
                    pend_at = nm
                    f1, f2 = w_step(wi); f1(); pend2 = f2; wi += 1
        if pend2: pend2()
        while wi < 32:
            f1, f2 = w_step(wi); f1(); f2(); wi += 1
        lg.drain(A)
        A.nop(8)
        M = "s[62:63]"
        PR = R['s_priv']
        A(f"  v_and_b32 v{t0}, 1, v{lane}")
        A(f"  v_cmp_eq_u32 {M}, 1, v{t0}")
        A(f"  v_lshlrev_b32 v{t0}, 3, v{t0}")
        A(f"  v_bfe_u32 v{t2}, v{lane}, 1, 3")
        A(f"  v_lshl_add_u32 v{t0}, v{t2}, 6, v{t0}")
        A(f"  v_lshrrev_b32 v{t2}, 4, v{lane}")
        A(f"  v_lshl_add_u32 v{t0}, v{t2}, 4, v{t0}")
        A(f"  v_add_u32 v{t1}, s{PR}, v{t0}")
        for i in range(4):
            b = BF + 6*i
            r0, r1, r2, r3 = acc+4*i, acc+4*i+1, acc+4*i+2, acc+4*i+3
            A(f"  v_cndmask_b32 v{b}, v{r2}, v{r0}, {M}")
            A(f"  v_cndmask_b32 v{b+1}, v{r3}, v{r1}, {M}")
        for i in range(4):
            b = BF + 6*i
            A(f"  v_mov_b32_dpp v{b+2}, v{b} quad_perm:[1,0,3,2] row_mask:0xf bank_mask:0xf")
            A(f"  v_mov_b32_dpp v{b+3}, v{b+1} quad_perm:[1,0,3,2] row_mask:0xf bank_mask:0xf")
        for i in range(4):
            b = BF + 6*i
            sa, sb, xa, xb2, p0 = b, b+1, b+2, b+3, b+4
            r0, r1, r2, r3 = acc+4*i, acc+4*i+1, acc+4*i+2, acc+4*i+3
            A(f"  v_cndmask_b32 v{sa}, v{r0}, v{xa}, {M}")
            A(f"  v_cndmask_b32 v{sb}, v{xa}, v{r2}, {M}")
            A(f"  v_cndmask_b32 v{r0}, v{r1}, v{xb2}, {M}")
            A(f"  v_cndmask_b32 v{r2}, v{xb2}, v{r3}, {M}")
            A(f"  v_cvt_pk_bf16_f32 v{p0}, v{sa}, v{sb}")
            A(f"  v_cvt_pk_bf16_f32 v{p0+1}, v{r0}, v{r2}")
            A(f"  ds_write_b64 v{t1}, {v(p0,2)} offset:{512*i}")
        o = AF
        A(f"  v_and_b32 v{t0}, 31, v{lane}")
        A(f"  v_lshlrev_b32 v{t0}, 4, v{t0}")
        A(f"  v_lshrrev_b32 v{t2}, 5, v{lane}")
        for j in range(2):
            A(f"  v_mul_u32_u24 v{o+8+j}, {(T[2*j+1]-T[2*j])*512}, v{t2}")
            A(f"  v_add_u32 v{o+8+j}, v{o+8+j}, v{t0}")
            A(f"  v_add_u32 v{o+8+j}, {T[2*j]*512}, v{o+8+j}")
        A(f"  v_lshlrev_b32 v{t0}, 4, v{lane}")
        A(f"  v_add_u32 v{t1}, s{PR}, v{t0}")
        A(f"  s_lshl_b32 s{st0}, s{s_d}, 12")
        A(f"  s_add_u32 s{st0}, s{st0}, {WS_ZT}")
        A(f"  s_waitcnt lgkmcnt(0)")
        A(f"  ds_read_b128 {v(o,4)}, v{t1}")
        A(f"  ds_read_b128 {v(o+4,4)}, v{t1} offset:1024")
        vm_states.append(vmx)
        if hw == 0: A(f"  s_branch {Lj}")
    A.label(Lj)
    assert vm_states[0].ops == vm_states[1].ops, (vm_states[0].ops, vm_states[1].ops)
    vm.ops = vm_states[0].ops
    after_main()
    A(f"  s_waitcnt lgkmcnt(1)")
    A(f"  buffer_store_dwordx4 {v(AF,4)}, v{AF+8}, s[{SWS}:{SWS+3}], s{st0} offen{store_sc}"); vm.issue("zst")
    A(f"  s_waitcnt lgkmcnt(0)")
    A(f"  buffer_store_dwordx4 {v(AF+4,4)}, v{AF+9}, s[{SWS}:{SWS+3}], s{st0} offen{store_sc}"); vm.issue("zst")


def conv_finish5(A, R, acc, AF, BF, vm, lg, store_sc, pre_barrier, after_bar, after_add):
    lane = R['lane']; t0, t1 = R['t0'], R['t1']; sw = R['s_wave']; st0, st1 = R['st0'], R['st1']; SWS = R['srd_ws']
    PR = R['s_priv']
    lg.drain(A)
    A(f"  v_lshlrev_b32 v{t0}, 4, v{lane}")
    A(f"  v_add_u32 v{t1}, s{PR}, v{t0}")
    Lh1 = A.uniq("cvh"); Lj = A.uniq("cvj")
    A(f"  s_cmp_lg_u32 s{s_hw}, 0")
    A(f"  s_cbranch_scc1 {Lh1}")
    for i in range(4): A(f"  ds_write_b128 v{t1}, {v(acc+16+4*i,4)} offset:{1024*i}")
    A(f"  s_branch {Lj}")
    A.label(Lh1)
    for i in range(4): A(f"  ds_write_b128 v{t1}, {v(acc+4*i,4)} offset:{1024*i}")
    A(f"  s_nop 1")
    for i in range(16): A(f"  v_mov_b32 v{acc+i}, v{acc+16+i}")
    A.label(Lj)
    tz = BF + 30; tx = BF + 31
    A(f"  v_xor_b32 v{tx}, 4096, v{t1}")
    A(f"  v_and_b32 v{t0}, 1, v{lane}")
    A(f"  v_cmp_eq_u32 s[62:63], 1, v{t0}")
    A(f"  v_lshlrev_b32 v{t0}, 3, v{t0}")
    A(f"  v_bfe_u32 v{R['t2']}, v{lane}, 1, 3")
    A(f"  v_lshl_add_u32 v{t0}, v{R['t2']}, 6, v{t0}")
    A(f"  v_lshrrev_b32 v{R['t2']}, 4, v{lane}")
    A(f"  v_lshl_add_u32 v{tz}, v{R['t2']}, 4, v{t0}")
    pre_barrier()
    A(f"  s_waitcnt lgkmcnt(0)")
    A(f"  s_barrier")
    o = AF
    for i in range(4):
        A(f"  ds_read_b128 {v(o+4*i,4)}, v{tx} offset:{1024*i}"); lg.issue(f"xr{i}")
    after_bar()
    for i in range(4):
        lg.wait(A, f"xr{i}")
        for j in range(4): A(f"  v_add_f32 v{acc+4*i+j}, v{acc+4*i+j}, v{o+4*i+j}")
    M = "s[62:63]"
    for i in range(4):
        b = BF + 6*i
        r0, r1, r2, r3 = acc+4*i, acc+4*i+1, acc+4*i+2, acc+4*i+3
        A(f"  v_cndmask_b32 v{b}, v{r2}, v{r0}, {M}")
        A(f"  v_cndmask_b32 v{b+1}, v{r3}, v{r1}, {M}")
    for i in range(4):
        b = BF + 6*i
        A(f"  v_mov_b32_dpp v{b+2}, v{b} quad_perm:[1,0,3,2] row_mask:0xf bank_mask:0xf")
        A(f"  v_mov_b32_dpp v{b+3}, v{b+1} quad_perm:[1,0,3,2] row_mask:0xf bank_mask:0xf")
    A(f"  v_and_b32 v{tx}, 0xfffff000, v{tx}")
    A(f"  v_add_u32 v{tz}, v{tx}, v{tz}")
    for i in range(4):
        b = BF + 6*i
        sa, sb, xa, xb2, p0 = b, b+1, b+2, b+3, b+4
        r0, r1, r2, r3 = acc+4*i, acc+4*i+1, acc+4*i+2, acc+4*i+3
        A(f"  v_cndmask_b32 v{sa}, v{r0}, v{xa}, {M}")
        A(f"  v_cndmask_b32 v{sb}, v{xa}, v{r2}, {M}")
        A(f"  v_cndmask_b32 v{r0}, v{r1}, v{xb2}, {M}")
        A(f"  v_cndmask_b32 v{r2}, v{xb2}, v{r3}, {M}")
        A(f"  v_cvt_pk_bf16_f32 v{p0}, v{sa}, v{sb}")
        A(f"  v_cvt_pk_bf16_f32 v{p0+1}, v{r0}, v{r2}")
        A(f"  ds_write_b64 v{tz}, {v(p0,2)} offset:{512*i}"); lg.issue("zw")
    A(f"  v_lshlrev_b32 v{t0}, 4, v{lane}")
    A(f"  v_add_u32 v{tx}, v{tx}, v{t0}")
    A(f"  s_lshl_b32 s{st0}, s{s_d}, 12")
    A(f"  s_lshl_b32 s{st1}, s{s_hw}, 11")
    A(f"  s_add_u32 s{st0}, s{st0}, s{st1}")
    A(f"  s_add_u32 s{st0}, s{st0}, {WS_ZT}")
    lg.wait(A, "zw")
    A(f"  ds_read_b128 {v(o,4)}, v{tx}"); lg.issue("zr0")
    A(f"  ds_read_b128 {v(o+4,4)}, v{tx} offset:1024"); lg.issue("zr1")
    lg.wait(A, "zr0")
    A(f"  buffer_store_dwordx4 {v(o,4)}, v{t0}, s[{SWS}:{SWS+3}], s{st0} offen{store_sc}"); vm.issue("zst")
    lg.wait(A, "zr1")
    A(f"  buffer_store_dwordx4 {v(o+4,4)}, v{t0}, s[{SWS}:{SWS+3}], s{st0} offen offset:1024{store_sc}"); vm.issue("zst")
    after_add()
```
